```python
import torch

def _softmax(x, axis=-1):
    return torch.softmax(x, dim=axis)
def _gelu(x):
    return torch.nn.functional.gelu(x, approximate="tanh")
def _silu(x):
    return torch.nn.functional.silu(x)
def _sigmoid(x):
    return torch.sigmoid(x)
def _layernorm(x, axis=-1, eps=1e-5):
    m = x.mean(dim=axis, keepdim=True)
    v = x.var(dim=axis, keepdim=True, unbiased=False)
    return (x - m) / torch.sqrt(v + eps)
def _scatter_add(tgt, idx, src, axis=0):
    return tgt.clone().index_add_(axis, idx, src)
def _segment_sum(src, seg, n):
    out = torch.zeros((n,) + src.shape[1:], dtype=src.dtype)
    return out.index_add_(0, seg, src)
def _pad(x, pw):
    flat = tuple(v for pair in reversed(pw) for v in pair)
    return torch.nn.functional.pad(x, flat)

kernel_name = 'parallel_sum__spectral_gfnet__mixer_channel_mlp__prompt'

def setup_inputs():

    _w = (lambda a: (lambda t: t.to(torch.bfloat16) if t.is_floating_point() else t)(torch.as_tensor(a)))
    def _A_setup():
        B, S, D = 1, 2048, 640
        Df = D // 2 + 1
        return {
            "x": _w((lambda *s: torch.randn(*s, dtype=torch.bfloat16) * 0.05)(B, S, D)),
            "w_r": _w((lambda *s: torch.randn(*s, dtype=torch.bfloat16) * 0.8)(S, Df) * 0.02),
            "w_i": _w((lambda *s: torch.randn(*s, dtype=torch.bfloat16) * 0.8)(S, Df) * 0.02),
        }
    _A_in = _A_setup()

    def _B_setup():
        B, S, D, F = 1, 2048, 640, 1728
        return {
            "x": _w((lambda *s: torch.randn(*s, dtype=torch.bfloat16) * 0.05)(B, S, D)),
            "w1": _w((lambda *s: torch.randn(*s, dtype=torch.bfloat16) * 0.8)(D, F) * (D ** -0.5)),
            "b1": _w((lambda *s: torch.randn(*s, dtype=torch.bfloat16) * 0.4)(F)),
            "w2": _w((lambda *s: torch.randn(*s, dtype=torch.bfloat16) * 0.05)(F, D) * (F ** -0.5)),
            "b2": _w((lambda *s: torch.randn(*s, dtype=torch.bfloat16) * 0.05)(D)),
        }
    _B_in = _B_setup()

    return {
        "A_x": _A_in["x"],
        "A_w_r": _A_in["w_r"],
        "A_w_i": _A_in["w_i"],
        "B_x": _B_in["x"],
        "B_w1": _B_in["w1"],
        "B_b1": _B_in["b1"],
        "B_w2": _B_in["w2"],
        "B_b2": _B_in["b2"],
    }

def reference(A_x, A_w_r, A_w_i, B_x, B_w1, B_b1, B_w2, B_b2):
    def _A_ref(x, w_r, w_i):
        B, S, D = x.shape
        X = (lambda x, axes=(-2,-1): torch.fft.rfft2(x.float(), dim=axes))(x, axes=(-2, -1))
        W = w_r + 1j * w_i
        X = X * W
        y = (lambda x, s, axes=(-2,-1): torch.fft.irfft2(x, s=s, dim=axes).to(torch.bfloat16))(X, (S, D), axes=(-2, -1))
        return y

    def _B_ref(x, w1, b1, w2, b2):
        y = _layernorm(x, axis=-1)
        h = _gelu(torch.einsum("bsd,df->bsf", y, w1) + b1)
        return torch.einsum("bsf,fd->bsd", h, w2) + b2

    x = A_x
    xn = _layernorm(x, axis=-1)
    return x + _A_ref(xn, A_w_r, A_w_i) + _B_ref(xn, B_w1, B_b1, B_w2, B_b2)
```

```python
import struct
def f2u(x): return struct.unpack('<I', struct.pack('<f', x))[0]
def fx(x): return '0x%08x' % f2u(x)
X1T_OFF, X1T_SZ = 0x0, 642*4096
WT_OFF,  WT_SZ  = 0x300000, 321*8192
YF_OFF,  YF_SZ  = 0x600000, 64*40*1024
AF_OFF,  AF_SZ  = 0x900000, 128*75*1024
BF_OFF,  BF_SZ  = 0x1300000, 40*75*1024
OOB = 0x40000000
class Asm:
    def __init__(s): s.l = []
    def __call__(s, t):
        for x in t.strip('\n').split('\n'):
            x = x.strip()
            if x: s.l.append(x if x.endswith(':') or x.startswith('.') else '    ' + x)
    def text(s): return '\n'.join(s.l) + '\n'
    def srd(s, d, p, size, off=0):
        if off:
            s(f's_add_u32 s{d}, s{p}, 0x{off:x}\ns_addc_u32 s{d+1}, s{p+1}, 0')
        else:
            s(f's_mov_b32 s{d}, s{p}\ns_mov_b32 s{d+1}, s{p+1}')
        s(f's_mov_b32 s{d+2}, 0x{size:x}\ns_mov_b32 s{d+3}, 0x00020000')
def vr(b, n=1): return f'v{b}' if n == 1 else f'v[{b}:{b+n-1}]'
def ar(b, n=1): return f'a{b}' if n == 1 else f'a[{b}:{b+n-1}]'
def header(a, name):
    a(f'.globl {name}\n.p2align 8\n.type {name},@function\n{name}:')
def descriptor(name, vgpr, accum, sgpr=96):
    return f'''.amdhsa_kernel {name}
  .amdhsa_next_free_vgpr {vgpr}
  .amdhsa_next_free_sgpr {sgpr}
  .amdhsa_accum_offset {accum}
  .amdhsa_group_segment_fixed_size 0
  .amdhsa_kernarg_size 88
  .amdhsa_user_sgpr_count 2
  .amdhsa_user_sgpr_kernarg_segment_ptr 1
  .amdhsa_system_sgpr_workgroup_id_x 1
.end_amdhsa_kernel
'''
```

```python
from common import *
def gen_k1(a, ST=''):
    header(a, 'k1_kernel')
    a('''s_cmp_ge_u32 s2, 416
    s_cbranch_scc1 K1_END
    s_load_dwordx4 s[4:7], s[0:1], 0
    s_load_dwordx2 s[8:9], s[0:1], 16
    s_load_dwordx2 s[10:11], s[0:1], 80
    v_lshrrev_b32 v1, 6, v0
    v_and_b32 v2, 63, v0
    v_readfirstlane_b32 s3, v1
    s_cmp_ge_u32 s2, 320
    s_cbranch_scc1 K1_TR''')
    a('''s_and_b32 s12, s2, 7
    s_lshl_b32 s12, s12, 3
    s_lshr_b32 s13, s2, 3
    s_and_b32 s15, s13, 7
    s_add_u32 s12, s12, s15
    s_lshr_b32 s13, s13, 3
    v_lshrrev_b32 v3, 3, v0
    v_and_b32 v4, 7, v0
    v_lshlrev_b32 v5, 6, v3
    v_add_u32 v5, s12, v5
    v_mul_u32_u24 v5, 1280, v5
    v_lshl_add_u32 v5, v4, 4, v5
    s_waitcnt lgkmcnt(0)''')
    a.srd(16, 4, 2048*1280)
    a.srd(20, 10, X1T_SZ, X1T_OFF)
    a.srd(24, 10, YF_SZ, YF_OFF)
    XF = 16
    TF = 96
    TM = 176
    D = 208
    for t in range(10):
        a(f'buffer_load_dwordx4 {vr(XF+8*t+4,4)}, v5, s[16:19], 0 offen offset:{t*128}')
    a(f'''s_lshl_b32 s15, s13, 2
    s_add_u32 s15, s15, s3
    s_cmp_ge_u32 s15, 10
    s_cselect_b32 s14, 1, 0
    s_mul_i32 s31, s14, 10
    s_sub_u32 s15, s15, s31
    s_mul_i32 s31, s14, 20480
    s_lshl_b32 s15, s15, 5
    v_and_b32 v6, 31, v2
    v_add_u32 v6, s15, v6
    v_and_b32 v7, 1, v6
    v_and_b32 v8, 0xfffffffe, v6
    v_add_u32 v8, s14, v8
    v_lshl_add_u32 v9, v8, 1, v7
    v_cmp_eq_u32 vcc, 1, v9
    v_mov_b32 v10, 320
    v_lshrrev_b32 v11, 5, v2
    v_cndmask_b32 v8, v8, v10, vcc
    v_cndmask_b32 v7, v7, 0, vcc
    v_lshl_add_u32 v9, v8, 1, v7
    v_lshlrev_b32 v9, 12, v9
    v_lshl_add_u32 v9, v11, 5, v9
    s_lshl_b32 s15, s12, 6
    v_add_u32 v9, s15, v9
    v_cvt_f32_u32 v8, v8
    v_cvt_f32_u32 v7, v7
    v_cvt_f32_u32 v10, v11
    v_mul_f32 v8, {fx(1/640)}, v8
    v_mul_f32 v7, 0.25, v7
    v_mul_f32 v10, {fx(8.0)}, v10
    v_fmac_f32 v7, v10, v8'''.replace('0.25', fx(0.25)))
    for t in range(20):
        for j in range(8): a(f'v_fmamk_f32 v{TM+j}, v8, {fx(float(16*t+j))}, v7')
        for j in range(8): a(f'v_cos_f32 v{TM+j}, v{TM+j}')
        for j in range(4): a(f'v_cvt_pk_bf16_f32 v{TF+4*t+j}, v{TM+2*j}, v{TM+2*j+1}')
    a('v_and_b32 v6, 31, v2')
    for e in range(4):
        a(f'''v_add_u32 v10, {2*e}, v11
        v_xor_b32 v10, v10, v6
        v_lshlrev_b32 v10, 4, v10
        v_lshl_add_u32 v10, v11, 9, v10
        v_add_u32 v10, s31, v10
        v_add_u32 v{12+e}, {e*1024}, v10''')
    for t in range(10):
        a(f's_waitcnt vmcnt({9-t})')
        for k in range(4):
            src = XF+8*t+4+k
            a(f'v_lshlrev_b32 v{XF+8*t+2*k}, 16, v{src}\nv_and_b32 v{XF+8*t+2*k+1}, 0xffff0000, v{src}')
    P = lambda i: vr(XF+2*i, 2)
    for k in range(4): a(f'v_pk_add_f32 {vr(TM+2*k,2)}, {P(k)}, {P(k+4)}')
    for i in range(8, 40): a(f'v_pk_add_f32 {vr(TM+2*(i%4),2)}, {vr(TM+2*(i%4),2)}, {P(i)}')
    def red(dst):
        a(f'''v_pk_add_f32 {vr(TM,2)}, {vr(TM,2)}, {vr(TM+2,2)}
        v_pk_add_f32 {vr(TM+4,2)}, {vr(TM+4,2)}, {vr(TM+6,2)}
        s_nop 0
        v_pk_add_f32 {vr(TM,2)}, {vr(TM,2)}, {vr(TM+4,2)}
        s_nop 0
        v_add_f32 v{TM}, v{TM}, v{TM+1}
        s_nop 1
        v_add_f32_dpp v{TM+1}, v{TM}, v{TM} quad_perm:[1,0,3,2] row_mask:0xf bank_mask:0xf
        s_nop 1
        v_add_f32_dpp v{TM}, v{TM+1}, v{TM+1} quad_perm:[2,3,0,1] row_mask:0xf bank_mask:0xf
        s_nop 1
        v_add_f32_dpp v{TM+1}, v{TM}, v{TM} row_half_mirror row_mask:0xf bank_mask:0xf
        v_mul_f32 v{dst}, {fx(1/640)}, v{TM+1}''')
    M = TM+8
    red(M+2)
    a(f'v_sub_f32 v{M}, 0, v{M+2}\nv_sub_f32 v{M+1}, 0, v{M+2}')
    for i in range(40):
        d = vr(D+2*(i % 8), 2)
        a(f'v_pk_add_f32 {d}, {P(i)}, {vr(M,2)}')
        if i >= 4:
            k = i-4; dk = vr(D+2*(k % 8), 2); acc = vr(TM+2*(k % 4), 2)
            a(f'v_pk_mul_f32 {acc}, {dk}, {dk}' if k < 4 else f'v_pk_fma_f32 {acc}, {dk}, {dk}, {acc}')
    for k in range(36, 40):
        dk = vr(D+2*(k % 8), 2); acc = vr(TM+2*(k % 4), 2)
        a(f'v_pk_fma_f32 {acc}, {dk}, {dk}, {acc}')
    red(M+3)
    def rbf(dst, src):
        a(f'v_cvt_pk_bf16_f32 v{dst}, v{src}, v{src}\nv_and_b32 v{dst}, 0xffff0000, v{dst}')
    def rstd(dst, var):
        rbf(dst, var)
        a(f'v_add_f32 v{dst}, {fx(1e-5)}, v{dst}')
        rbf(dst, dst)
        a(f'v_sqrt_f32 v{dst}, v{dst}\ns_nop 0')
        rbf(dst, dst)
        a(f'v_rcp_f32 v{dst}, v{dst}\ns_nop 0')
    MB, R, OF, SG, M2, V2, R2, YA, YB = M+4, M+6, M+8, M+10, M+12, M+13, M+14, M+16, M+18
    rbf(MB, M+2); rstd(R, M+3)
    a(f'''v_mov_b32 v{R+1}, v{R}
    v_mul_f32 v{OF}, v{MB}, v{R}
    v_sub_f32 v{M2}, v{M+2}, v{MB}
    v_mul_f32 v{M2}, v{M2}, v{R}
    v_mul_f32 v{V2}, v{M+3}, v{R}
    v_mul_f32 v{V2}, v{V2}, v{R}
    v_mov_b32 v{YB}, v{OF}
    v_mul_f32 v{OF}, -2.0, v{OF}
    v_mov_b32 v{OF+1}, v{OF}
    v_lshlrev_b32 v10, 9, v4
    v_xor_b32 v6, v3, v4
    v_lshl_add_u32 v6, v6, 4, v10''')
    for t in range(5):
        for k in range(4):
            i = 4*t+k
            a(f'v_pk_add_f32 {vr(D+2*k,2)}, {P(i)}, {P(i+20)}')
            a(f'v_pk_add_f32 {vr(D+8+2*k,2)}, {P(i)}, {P(i+20)} neg_lo:[0,1] neg_hi:[0,1]')
        for k in range(4):
            a(f'v_pk_fma_f32 {vr(D+2*k,2)}, {vr(D+2*k,2)}, {vr(R,2)}, {vr(OF,2)}')
            a(f'v_pk_mul_f32 {vr(D+8+2*k,2)}, {vr(D+8+2*k,2)}, {vr(R,2)}')
        o = D+16+8*(t%2)
        for k in range(8): a(f'v_cvt_pk_bf16_f32 v{o+k}, v{D+2*k}, v{D+2*k+1}')
        a(f'ds_write_b128 v6, {vr(o,4)} offset:{t*4096}')
        a(f'ds_write_b128 v6, {vr(o+4,4)} offset:{20480+t*4096}')
    rbf(M2, M2); rstd(R2, V2)
    a(f'''v_add_f32 v{YB}, v{YB}, v{M2}
    v_mul_f32 v{YA}, v{R}, v{R2}
    v_mul_f32 v{YB}, v{YB}, v{R2}
    v_mov_b32 v{YA+1}, v{YA}
    v_sub_f32 v{YB}, 0, v{YB}
    v_lshl_add_u32 v10, v3, 4, v10
    v_mov_b32 v{YB+1}, v{YB}
    s_mul_i32 s15, s12, 40960
    s_lshl_b32 s28, s13, 13
    s_add_u32 s15, s15, s28
    s_add_u32 s28, s15, 4096''')
    for nt in range(5):
        if nt < 4: a(f's_cmp_lg_u32 s13, {nt}\ns_cbranch_scc1 K1_Y{nt+1}')
        for k in range(8): a(f'v_pk_fma_f32 {vr(D+2*k,2)}, {P(8*nt+k)}, {vr(YA,2)}, {vr(YB,2)}')
        if nt < 4: a(f's_branch K1_YS\nK1_Y{nt+1}:')
    a('K1_YS:')
    for k in range(8): a(f'v_cvt_pk_bf16_f32 v{TM+k}, v{D+2*k}, v{D+2*k+1}')
    a(f'buffer_store_dwordx4 {vr(TM,4)}, v10, s[24:27], s15 offen {ST}')
    a(f'buffer_store_dwordx4 {vr(TM+4,4)}, v10, s[24:27], s28 offen {ST}')
    a('s_waitcnt lgkmcnt(0)\ns_barrier')
    for ks in range(20): a(f'ds_read_b128 {vr(XF+4*ks,4)}, v{12+ks%4} offset:{(ks//4)*4096}')
    AC = D
    for ks in range(20):
        a(f's_waitcnt lgkmcnt({min(15,19-ks)})')
        a(f'v_mfma_f32_32x32x16_bf16 {vr(AC,16)}, {vr(XF+4*ks,4)}, {vr(TF+4*ks,4)}, {vr(AC,16) if ks else 0}')
    a('s_nop 7\ns_nop 3')
    for k in range(8): a(f'v_cvt_pk_bf16_f32 v{D+16+k}, v{AC+2*k}, v{AC+2*k+1}')
    a(f'''buffer_store_dwordx4 {vr(D+16,4)}, v9, s[20:23], 0 offen {ST}
    buffer_store_dwordx4 {vr(D+20,4)}, v9, s[20:23], 0 offen offset:16 {ST}
    s_endpgm''')
    a('''K1_TR:
    s_sub_u32 s12, s2, 320
    s_and_b32 s13, s12, 15
    s_lshr_b32 s12, s12, 4
    s_mul_i32 s12, s12, 54
    v_add_u32 v3, s12, v2
    v_lshlrev_b32 v3, 1, v3
    s_lshl_b32 s14, s13, 4
    s_add_u32 s14, s14, s3
    s_mul_i32 s14, s14, 5136
    s_waitcnt lgkmcnt(0)''')
    a.srd(16, 6, 2048*642); a.srd(20, 8, 2048*642); a.srd(24, 10, WT_SZ, WT_OFF)
    for k in range(8):
        for i in range(4):
            a(f'''s_add_u32 s15, s14, {(32*i+k)*642}
            buffer_load_ushort v{16+4*k+i}, v3, s[16:19], s15 offen
            buffer_load_ushort v{48+4*k+i}, v3, s[20:23], s15 offen''')
    a('''v_mul_u32_u24 v4, 528, v2
    s_lshl_b32 s15, s3, 7
    v_add_u32 v4, s15, v4
    v_lshrrev_b32 v7, 5, v0
    v_and_b32 v8, 31, v0
    v_mul_u32_u24 v5, 528, v7
    v_lshl_add_u32 v5, v8, 4, v5
    v_add_u32 v7, s12, v7
    v_lshlrev_b32 v6, 13, v7
    v_lshl_add_u32 v6, v8, 4, v6
    s_lshl_b32 s15, s13, 9''')
    for k in range(8):
        a(f's_waitcnt vmcnt({56-8*k})')
        for i in range(4): a(f'v_lshl_or_b32 v{16+4*k+i}, v{48+4*k+i}, 16, v{16+4*k+i}')
        a(f'ds_write_b128 v4, {vr(16+4*k,4)} offset:{k*16}')
    a('s_waitcnt lgkmcnt(0)\ns_barrier')
    for r in range(7): a(f'ds_read_b128 {vr(80+4*r,4)}, v5 offset:{r*8*528}')
    for r in range(7):
        a(f's_waitcnt lgkmcnt({6-r})\nbuffer_store_dwordx4 {vr(80+4*r,4)}, v6, s[24:27], s15 offen {ST}')
        if r < 6: a('s_add_u32 s15, s15, 0x10000')
    a('K1_END:\ns_endpgm')
    return descriptor('k1_kernel', 240, 240)
```

```python
from common import *
import math
def gen_gemm1(a, ST):
    a('''s_and_b32 s12, s2, 7
    s_lshr_b32 s13, s2, 3
    s_and_b32 s14, s13, 1
    s_lshl_b32 s12, s12, 1
    s_add_u32 s12, s12, s14
    s_lshr_b32 s13, s13, 1
    s_and_b32 s14, s3, 1
    s_lshr_b32 s15, s3, 1
    v_lshrrev_b32 v3, 3, v2
    v_and_b32 v4, 7, v2
    v_lshlrev_b32 v5, 1, v3
    v_and_b32 v5, 4, v5
    v_xor_b32 v4, v4, v5
    v_mul_u32_u24 v3, 3456, v3
    v_lshl_add_u32 v3, v4, 4, v3
    v_lshlrev_b32 v4, 4, v2
    v_lshrrev_b32 v5, 5, v2
    v_lshlrev_b32 v6, 3, v5
    s_mul_i32 s32, s3, 55296
    s_mul_i32 s33, s13, 384
    s_add_u32 s32, s32, s33
    s_lshl_b32 s34, s12, 2
    s_add_u32 s34, s34, s3
    s_mul_i32 s34, s34, 40960
    s_mul_i32 s35, s14, 192
    s_add_u32 s35, s35, s33
    s_lshl_b32 s36, s3, 11
    s_lshl_b32 s37, s3, 12
    s_add_u32 s37, s37, 24576
    s_waitcnt lgkmcnt(0)''')
    a.srd(16, 4, 640*3456); a.srd(20, 10, YF_SZ, YF_OFF); a.srd(24, 6, 3456); a.srd(28, 10, AF_SZ, AF_OFF)
    BI = 160
    for fb in range(3):
        for g in range(4):
            a(f'buffer_load_dwordx2 {vr(BI+8*fb+2*g,2)}, v6, s[24:27], s35 offen offset:{fb*64+g*16}')
    def dma(st):
        slot = (st % 4)*40960
        out = []
        for fp in range(3):
            for kk in range(2):
                out.append(f'''s_add_u32 m0, s36, {slot+fp*8192+kk*1024}
                s_add_u32 s38, s32, {st*64*3456+kk*8*3456+fp*128}
                buffer_load_dwordx4 v3, s[16:19], s38 offen lds''')
        out.append(f'''s_add_u32 m0, s37, {slot}
        s_add_u32 s38, s34, {st*4096}
        buffer_load_dwordx4 v4, s[20:23], s38 offen lds''')
        for ks in range(1, 4): out.append(f'buffer_load_dwordx4 v4, s[20:23], s38 offen offset:{ks*1024} lds')
        return out
    for st in range(4):
        for x in dma(st): a(x)
    a('''v_bfe_u32 v7, v2, 2, 2
    v_and_b32 v8, 3, v2
    v_bfe_u32 v9, v2, 4, 1
    v_lshlrev_b32 v10, 10, v5
    v_lshl_add_u32 v10, v7, 7, v10
    v_lshl_add_u32 v10, v9, 5, v10
    v_lshl_add_u32 v10, v8, 3, v10
    v_lshrrev_b32 v7, 1, v7
    v_xor_b32 v7, s14, v7
    v_lshl_add_u32 v11, v7, 6, v10
    v_xor_b32 v12, 64, v11
    s_lshl_b32 s39, s14, 13
    s_lshl_b32 s40, s15, 13
    s_add_u32 s40, s40, 24576''')
    WA = 16
    for sl in range(4):
        a(f'''s_add_u32 s41, s39, {sl*40960}
        v_add_u32 v{WA+4*sl}, s41, v11
        s_add_u32 s41, s41, s39
        v_add_u32 v{WA+4*sl+1}, s41, v12
        s_add_u32 s41, s40, {sl*40960}
        v_add_u32 v{WA+4*sl+2}, s41, v4''')
    AC = 32
    FR = 128
    FB = [192, 212]
    acc = lambda fb, tb: AC+32*fb+16*tb
    a('s_waitcnt vmcnt(40)')
    for fb in range(3):
        for g in range(4):
            for p in range(2):
                src = BI+8*fb+2*g+p
                for tb in range(2):
                    d = acc(fb, tb)+4*g+2*p
                    a(f'v_lshlrev_b32 v{d}, 16, v{src}\nv_and_b32 v{d+1}, 0xffff0000, v{src}')
    def reads(st, ks, buf):
        sl = st % 4; b = FB[buf]; out = []
        for tb in range(2): out.append(f'ds_read_b128 {vr(b+12+4*tb,4)}, v{WA+4*sl+2} offset:{tb*4096+ks*1024}')
        for fb in range(3):
            reg = WA+4*sl+(1 if fb == 1 else 0); off = ks*2048+(8192 if fb == 2 else 0)
            for u in range(2): out.append(f'ds_read_b64_tr_b16 {vr(b+4*fb+2*u,2)}, v{reg} offset:{off+u*512}')
        return out
    def mf(buf):
        b = FB[buf]
        return [f'v_mfma_f32_32x32x16_bf16 {vr(acc(fb,tb),16)}, {vr(b+4*fb,4)}, {vr(b+12+4*tb,4)}, {vr(acc(fb,tb),16)}' for fb in range(3) for tb in range(2)]
    def weave(m, f):
        n = len(m); k = 0
        for i, x in enumerate(m):
            a(x)
            e = (len(f)*(i+1)+n-1)//n
            while k < e: a(f[k]); k += 1
    a('s_waitcnt vmcnt(30)\ns_barrier')
    for x in reads(0, 0, 0): a(x)
    buf = 0
    for st in range(10):
        for ks in range(4):
            if ks < 3:
                a('s_waitcnt lgkmcnt(0)')
                weave(mf(buf), reads(st, ks+1, buf ^ 1))
            else:
                if st < 9:
                    rem = min(9, st+3)-(st+1)
                    a(f's_waitcnt lgkmcnt(0) vmcnt({10*rem})\ns_barrier')
                    f = reads(st+1, 0, buf ^ 1)
                    for x in f: a(x)
                    weave(mf(buf), dma(st+4) if st+4 <= 9 else [])
                else:
                    a('s_waitcnt lgkmcnt(0)')
                    weave(mf(buf), [])
            buf ^= 1
    c0 = -2*math.log2(math.e)*math.sqrt(2/math.pi); c1 = c0*0.044715
    a(f'''s_mov_b32 s42, {fx(c1)}
    s_mov_b32 s43, s42
    v_mov_b32 v8, {fx(c0)}
    v_mov_b32 v9, {fx(c0)}
    v_bfe_u32 v6, v2, 4, 1
    v_mul_u32_u24 v6, 76800, v6
    v_lshl_add_u32 v6, v5, 9, v6
    v_and_b32 v7, 15, v2
    v_lshl_add_u32 v6, v7, 4, v6
    s_lshl_b32 s38, s12, 1
    s_add_u32 s38, s38, s15
    s_mul_i32 s38, s38, 307200
    s_mul_i32 s39, s13, 6144
    s_mul_i32 s40, s14, 3072
    s_add_u32 s38, s38, s39
    s_add_u32 s38, s38, s40
    s_add_u32 s39, s38, 153600
    s_nop 7''')
    T = 128
    n = 0
    for fb in range(3):
        for tb in range(2):
            x = acc(fb, tb); t = T+16*(n % 2); o = T+32+8*(n % 2); n += 1
            for k in range(8): a(f'v_pk_mul_f32 {vr(t+2*k,2)}, {vr(x+2*k,2)}, {vr(x+2*k,2)}')
            for k in range(8): a(f'v_pk_fma_f32 {vr(t+2*k,2)}, {vr(t+2*k,2)}, s[42:43], v[8:9]')
            for k in range(8): a(f'v_pk_mul_f32 {vr(t+2*k,2)}, {vr(t+2*k,2)}, {vr(x+2*k,2)}')
            for k in range(16): a(f'v_exp_f32 v{t+k}, v{t+k}')
            for k in range(8): a(f'v_pk_add_f32 {vr(t+2*k,2)}, {vr(t+2*k,2)}, 1.0 op_sel_hi:[1,0]')
            for k in range(16): a(f'v_rcp_f32 v{t+k}, v{t+k}')
            for k in range(8): a(f'v_pk_mul_f32 {vr(t+2*k,2)}, {vr(t+2*k,2)}, {vr(x+2*k,2)}')
            for k in range(8): a(f'v_cvt_pk_bf16_f32 v{o+k}, v{t+2*k}, v{t+2*k+1}')
            for tt in range(2):
                a(f'buffer_store_dwordx4 {vr(o+4*tt,4)}, v6, s[28:31], s{38+tb} offen offset:{fb*1024+tt*256} {ST}')
    a('s_endpgm')

def gen_fft(a, ST):
    a(f'''s_sub_u32 s12, s2, 144
    s_lshl_b32 s13, s12, 2
    s_add_u32 s13, s13, s3
    s_lshl_b32 s14, s13, 13
    s_add_u32 s15, s14, 4096
    s_mov_b32 s33, s15
    s_cmp_eq_u32 s13, 0
    s_cselect_b32 s15, {OOB}, s15
    s_cmp_ge_u32 s13, 320
    s_cselect_b32 s15, {OOB}, s15
    v_and_b32 v3, 31, v2
    v_lshrrev_b32 v4, 5, v2
    v_lshlrev_b32 v5, 6, v3
    v_lshl_add_u32 v5, v4, 5, v5
    v_lshlrev_b32 v6, 4, v2
    s_waitcnt lgkmcnt(0)''')
    a.srd(16, 10, X1T_SZ, X1T_OFF); a.srd(20, 10, WT_SZ, WT_OFF); a.srd(28, 10, AF_SZ, AF_OFF)
    aXr = lambda b, t: ar(8*b+4*t, 4)
    aXi = lambda b, t: ar(16+8*b+4*t, 4)
    aC1, aS1, aN1, aC2, aS2 = 32, 40, 48, 56, 88
    c2 = lambda base, b, bp, t: ar(base+16*b+8*bp+4*t, 4)
    W = 16; ACC = 48; PK = 112; TW = 160
    for b in range(2):
        for t in range(2):
            a(f'buffer_load_dwordx4 {aXr(b,t)}, v5, s[16:19], s14 offen offset:{b*2048+t*16}')
            a(f'buffer_load_dwordx4 {aXi(b,t)}, v5, s[16:19], s15 offen offset:{b*2048+t*16}')
    for b in range(2):
        for g in range(4):
            a(f'buffer_load_dwordx4 {vr(W+16*b+4*g,4)}, v6, s[20:23], s{14 if b==0 else 33} offen offset:{g*1024}')
    a(f'''v_cvt_f32_u32 v7, v3
    v_lshlrev_b32 v8, 2, v4
    v_cvt_f32_u32 v8, v8
    v_and_b32 v15, 1, v2
    v_mul_u32_u24 v15, 0x8000, v15
    v_lshl_or_b32 v15, v15, 16, v15''')
    R = lambda e: 8*(e//4)+e % 4
    def angles(dst, scale, ladd=0.0, extra=None):
        a(f'v_add_f32 v9, {fx(ladd)}, v7\nv_mul_f32 v9, {fx(scale)}, v9\nv_mul_f32 v10, v9, v8')
        if extra: a(f'v_fmamk_f32 v10, v7, {fx(extra)}, v10')
        for e in range(16): a(f'v_fmamk_f32 v{dst+e}, v9, {fx(float(R(e)))}, v10')
    T0, T1, T2 = ACC, ACC+16, ACC+32
    P = PK
    angles(T0, 1/32)
    for e in range(16): a(f'v_cos_f32 v{T1+e}, v{T0+e}\nv_sin_f32 v{T2+e}, v{T0+e}')
    for k in range(8): a(f'v_cvt_pk_bf16_f32 v{P+k}, v{T1+2*k}, v{T1+2*k+1}\nv_cvt_pk_bf16_f32 v{P+8+k}, v{T2+2*k}, v{T2+2*k+1}\nv_cvt_pk_bf16_f32 v{P+16+k}, -v{T2+2*k}, -v{T2+2*k+1}')
    for k in range(24): a(f'v_accvgpr_write_b32 a{aC1+k}, v{P+k}')
    tw = lambda s, e: (TW+32*s+e, TW+32*s+16+e)
    for s_, (ladd, extra) in enumerate([(0.0, None), (0.0, 1/64), (32.0, None)]):
        angles(T0, 1/2048, ladd, extra)
        for e in range(16): a(f'v_cos_f32 v{tw(s_,e)[0]}, v{T0+e}\nv_sin_f32 v{tw(s_,e)[1]}, v{T0+e}')
    angles(T0, 1/64)
    for e in range(16): a(f'v_cos_f32 v{T1+e}, v{T0+e}\nv_sin_f32 v{T2+e}, v{T0+e}')
    for k in range(8): a(f'v_cvt_pk_bf16_f32 v{P+k}, v{T1+2*k}, v{T1+2*k+1}\nv_cvt_pk_bf16_f32 v{P+8+k}, v{T2+2*k}, v{T2+2*k+1}')
    for m, base in enumerate([aC2, aS2]):
        for k in range(8):
            s_ = P+8*m+k
            a(f'''v_xor_b32 v11, v15, v{s_}
            v_xor_b32 v12, 0x80000000, v{s_}
            v_accvgpr_write_b32 a{base+k}, v{s_}
            v_xor_b32 v13, 0x80000000, v11
            v_accvgpr_write_b32 a{base+8+k}, v11
            v_accvgpr_write_b32 a{base+16+k}, v12
            v_accvgpr_write_b32 a{base+24+k}, v13''')
    aR = lambda b: ACC+32*b
    aI = lambda b: ACC+32*b+16
    pk = lambda which, b, t=0: PK+16*which+8*b+4*t
    def mm(d, terms):
        for i, (x, y) in enumerate(terms):
            a(f'v_mfma_f32_32x32x16_bf16 {vr(d,16)}, {x}, {y}, {vr(d,16) if i else 0}')
    def cmul(b, getw, conj, neg):
        for e0 in range(0, 16, 4):
            ws = [getw(e0+j, j) for j in range(4)]
            for j in range(4):
                e = e0+j; c, s_ = ws[j]
                a(f'v_mul_f32 v{8+j}, v{aI(b)+e}, v{s_}\nv_mul_f32 v{12+j}, v{aR(b)+e}, v{s_}')
            for j in range(4):
                e = e0+j; c, s_ = ws[j]
                if conj:
                    a(f'v_fma_f32 v{aR(b)+e}, v{aR(b)+e}, v{c}, v{8+j}\nv_fma_f32 v{aI(b)+e}, v{aI(b)+e}, v{c}, -v{12+j}')
                else:
                    a(f'v_fma_f32 v{aR(b)+e}, v{aR(b)+e}, v{c}, -v{8+j}\nv_fma_f32 v{aI(b)+e}, v{aI(b)+e}, v{c}, v{12+j}')
        for k in range(8):
            r_, i_ = aR(b)+2*k, aI(b)+2*k
            a(f'v_cvt_pk_bf16_f32 v{pk(0,b)+k}, v{r_}, v{r_+1}\nv_cvt_pk_bf16_f32 v{pk(1,b)+k}, v{i_}, v{i_+1}')
            if neg is not None:
                q = r_ if neg == 'r' else i_
                a(f'v_cvt_pk_bf16_f32 v{pk(2,b)+k}, -v{q}, -v{q+1}')
    V4 = lambda r: vr(r, 4)
    a('s_waitcnt vmcnt(8)')
    for b in range(2):
        mm(aR(b), [(aXr(b,t), ar(aC1+4*t,4)) for t in range(2)]+[(aXi(b,t), ar(aS1+4*t,4)) for t in range(2)])
        mm(aI(b), [(aXi(b,t), ar(aC1+4*t,4)) for t in range(2)]+[(aXr(b,t), ar(aN1+4*t,4)) for t in range(2)])
    a('s_nop 7')
    for b in range(2):
        if b: a('s_nop 3')
        cmul(b, lambda e, j: tw(b, e), True, 'r')
    a('s_nop 1')
    ST4 = [(bp, t) for bp in range(2) for t in range(2)]
    for b in range(2):
        mm(aR(b), [(c2(aC2,b,bp,t), V4(pk(0,bp,t))) for bp, t in ST4]+[(c2(aS2,b,bp,t), V4(pk(1,bp,t))) for bp, t in ST4])
        mm(aI(b), [(c2(aC2,b,bp,t), V4(pk(1,bp,t))) for bp, t in ST4]+[(c2(aS2,b,bp,t), V4(pk(2,bp,t))) for bp, t in ST4])
    a('s_waitcnt vmcnt(0)\ns_nop 7\ns_nop 3')
    for b in range(2):
        def gw(e, j):
            w = W+16*b+e; c, s_ = TW+32+j, TW+36+j
            a(f'v_lshlrev_b32 v{c}, 16, v{w}\nv_and_b32 v{s_}, 0xffff0000, v{w}')
            return (c, s_)
        cmul(b, gw, False, 'i')
    a('s_nop 1')
    for b in range(2):
        mm(aR(b), [(V4(pk(0,bp,t)), c2(aC2,b,bp,t)) for bp, t in ST4]+[(V4(pk(2,bp,t)), c2(aS2,b,bp,t)) for bp, t in ST4])
        mm(aI(b), [(V4(pk(1,bp,t)), c2(aC2,b,bp,t)) for bp, t in ST4]+[(V4(pk(0,bp,t)), c2(aS2,b,bp,t)) for bp, t in ST4])
    a('s_nop 7\ns_nop 3')
    for b in range(2): cmul(b, lambda e, j: tw(2*b, e), False, None)
    a('s_nop 1')
    for b in range(2):
        mm(aR(b), [(ar(aC1+4*t,4), V4(pk(0,b,t))) for t in range(2)]+[(ar(aN1+4*t,4), V4(pk(1,b,t))) for t in range(2)])
        mm(aI(b), [(ar(aC1+4*t,4), V4(pk(1,b,t))) for t in range(2)]+[(ar(aS1+4*t,4), V4(pk(0,b,t))) for t in range(2)])
    a('''v_mul_u32_u24 v5, 4160, v4
    v_lshl_add_u32 v5, v3, 4, v5
    s_lshl_b32 s14, s3, 2
    v_add_u32 v5, s14, v5
    v_and_b32 v6, 31, v0
    v_mul_u32_u24 v6, 1040, v6
    v_lshrrev_b32 v7, 5, v0
    v_lshl_add_u32 v6, v7, 4, v6
    v_lshrrev_b32 v7, 4, v0
    v_mul_u32_u24 v7, 76800, v7
    v_and_b32 v8, 15, v0
    v_lshl_add_u32 v7, v8, 4, v7
    s_lshl_b32 s14, s12, 8
    s_add_u32 s14, s14, 55296''')
    for b in range(2):
        if b: a('s_nop 7')
        for e in range(16):
            a(f'v_cvt_pk_bf16_f32 v{PK+16*b+e}, v{aR(b)+e}, v{aI(b)+e}')
        for e in range(16):
            a(f'ds_write_b32 v5, v{PK+16*b+e} offset:{(R(e)*65+32*b)*16}')
    a('s_waitcnt lgkmcnt(0)\ns_barrier')
    for r in range(8): a(f'ds_read_b128 {vr(16+4*r,4)}, v6 offset:{r*128}')
    a('s_mov_b32 s15, s14')
    for r in range(8):
        a(f's_waitcnt lgkmcnt({7-r})\nbuffer_store_dwordx4 {vr(16+4*r,4)}, v7, s[28:31], s15 offen {ST}\ns_add_u32 s15, s15, {16*76800}')
    a('s_cmp_lg_u32 s12, 80\ns_cbranch_scc1 K2_END')
    for k in range(4): a(f'v_mov_b32 v{60+k}, 0')
    for r in range(8):
        for q in range(1, 4): a(f'buffer_store_dwordx4 v[60:63], v7, s[28:31], s14 offen offset:{q*256} {ST}')
        a(f's_add_u32 s14, s14, {16*76800}')
    a('s_endpgm')

def gen_side(a, ST):
    a('''s_sub_u32 s12, s2, 225
    s_mul_i32 s13, s12, 81920
    s_mul_i32 s14, s3, 20480
    s_add_u32 s13, s13, s14
    v_lshlrev_b32 v3, 4, v2
    s_waitcnt lgkmcnt(0)''')
    a.srd(16, 8, 1728*1280); a.srd(20, 10, BF_SZ, BF_OFF)
    for p in range(5):
        a(f's_add_u32 m0, s14, {p*4096}\ns_add_u32 s15, s13, {p*4096}')
        for k in range(4): a(f'buffer_load_dwordx4 v3, s[16:19], s15 offen offset:{k*1024} lds')
    sc = 1.0/(320*2048)
    a(f'''s_lshl_b32 s24, s12, 2
    s_add_u32 s24, s24, s3
    s_cmp_ge_u32 s24, 105
    s_cbranch_scc1 K2_S_NOTG
    s_mul_i32 s25, s24, 52429
    s_lshr_b32 s25, s25, 18
    s_mul_i32 s26, s25, 5
    s_sub_u32 s26, s24, s26
    v_and_b32 v4, 15, v2
    v_lshrrev_b32 v5, 4, v2
    v_lshrrev_b32 v6, 2, v4
    v_mul_u32_u24 v6, 20, v6
    v_and_b32 v4, 3, v4
    v_add_u32 v4, v4, v6
    s_lshl_b32 s27, s26, 2
    v_add_u32 v4, s27, v4
    v_cvt_f32_u32 v4, v4
    s_lshl_b32 s27, s25, 4
    v_lshl_add_u32 v5, v5, 2, s27
    v_mov_b32 v7, {fx(sc)}
    v_mov_b32 v8, {fx(sc/2)}
    v_mov_b32 v9, {fx(-sc)}
    s_mul_i32 s27, s26, 76800
    s_add_u32 s25, s25, 54
    s_lshl_b32 s25, s25, 10
    s_add_u32 s27, s27, s25''')
    for cc in range(4):
        a(f'''v_add_u32 v6, {cc}, v5
        v_cvt_f32_u32 v{16+cc}, v6
        v_cmp_eq_u32 vcc, 0, v6
        v_cmp_le_u32 s[28:29], v10, v6
        v_cmp_lt_u32 s[30:31], v10, v6
        s_or_b64 s[28:29], s[28:29], vcc
        s_nop 1
        v_cndmask_b32 v{20+cc}, v7, v8, s[28:29]
        v_cndmask_b32 v{24+cc}, v9, 0, s[28:29]
        v_cndmask_b32 v{20+cc}, v{20+cc}, 0, s[30:31]'''.replace('v_add_u32 v6', 'v_mov_b32 v10, 320\nv_add_u32 v6'))
    for nt in range(8):
        a(f'v_add_f32 v11, {fx(80.0*nt)}, v4')
        for cc in range(4): a(f'v_mul_f32 v{28+cc}, v11, v{16+cc}')
        for cc in range(4): a(f'v_mul_f32 v{28+cc}, {fx(1/640)}, v{28+cc}')
        for cc in range(4): a(f'v_fract_f32 v{28+cc}, v{28+cc}')
        for cc in range(4): a(f'v_cos_f32 v{32+cc}, v{28+cc}\nv_sin_f32 v{36+cc}, v{28+cc}')
        for cc in range(4): a(f'v_mul_f32 v{32+cc}, v{32+cc}, v{20+cc}\nv_mul_f32 v{36+cc}, v{36+cc}, v{24+cc}')
        o = 40+4*nt
        for cc in range(4): a(f'v_cvt_pk_bf16_f32 v{o+cc}, v{32+cc}, v{36+cc}')
        a(f'buffer_store_dwordx4 {vr(o,4)}, v3, s[20:23], s27 offen {ST}\ns_add_u32 s27, s27, {5*76800}')
    a('''K2_S_NOTG:
    v_bfe_u32 v4, v2, 4, 1
    v_lshrrev_b32 v5, 5, v2
    v_bfe_u32 v6, v2, 2, 2
    v_and_b32 v7, 3, v2
    v_lshl_add_u32 v6, v5, 2, v6
    v_lshl_add_u32 v6, v4, 4, v6
    v_mul_u32_u24 v6, 1280, v6
    v_mul_u32_u24 v7, 40, v7
    s_mul_i32 s14, s3, 320
    v_add3_u32 v6, v6, v7, s14
    v_add_u32 v7, 40960, v6
    s_mul_i32 s15, s3, 768000
    s_lshl_b32 s13, s12, 11
    s_add_u32 s15, s15, s13
    s_waitcnt vmcnt(0)
    s_barrier''')
    for ks in range(2):
        for nb in range(10):
            o = 80+40*ks+4*nb
            off = (nb//5)*160+(nb % 5)*8
            for u in range(2): a(f'ds_read_b64_tr_b16 {vr(o+2*u,2)}, v{6+ks} offset:{off+u*10240}')
        a('s_waitcnt lgkmcnt(0)')
        for nb in range(10):
            o = 80+40*ks+4*nb
            a(f's_add_u32 s13, s15, {nb*76800+ks*1024}\nbuffer_store_dwordx4 {vr(o,4)}, v3, s[20:23], s13 offen {ST}')
    a('s_endpgm')

def gen_k2(a, ST=''):
    header(a, 'k2_kernel')
    a('''s_cmp_ge_u32 s2, 252
    s_cbranch_scc1 K2_END
    s_load_dwordx4 s[4:7], s[0:1], 32
    s_load_dwordx2 s[8:9], s[0:1], 48
    s_load_dwordx2 s[10:11], s[0:1], 80
    v_lshrrev_b32 v1, 6, v0
    v_and_b32 v2, 63, v0
    v_readfirstlane_b32 s3, v1
    s_cmp_ge_u32 s2, 225
    s_cbranch_scc1 K2_SIDE
    s_cmp_ge_u32 s2, 144
    s_cbranch_scc1 K2_FFT''')
    gen_gemm1(a, ST)
    a('K2_FFT:'); gen_fft(a, ST)
    a('K2_SIDE:'); gen_side(a, ST)
    a('K2_END:\ns_endpgm')
    return descriptor('k2_kernel', 256+120, 256)
```

```python
from common import *
def gen_k3(a, NS=6):
    header(a, 'k3_kernel')
    a('''s_cmp_ge_u32 s2, 256
    s_cbranch_scc1 K3_END
    s_load_dwordx2 s[4:5], s[0:1], 0
    s_load_dwordx4 s[8:11], s[0:1], 56
    s_load_dwordx2 s[6:7], s[0:1], 80
    v_lshrrev_b32 v1, 6, v0
    v_and_b32 v2, 63, v0
    v_readfirstlane_b32 s3, v1
    s_and_b32 s12, s2, 7
    s_lshr_b32 s13, s2, 3
    s_lshr_b32 s14, s12, 1
    s_lshl_b32 s14, s14, 3
    s_lshr_b32 s15, s13, 2
    s_add_u32 s14, s14, s15
    s_and_b32 s12, s12, 1
    s_lshl_b32 s12, s12, 2
    s_and_b32 s13, s13, 3
    s_add_u32 s15, s12, s13
    v_lshlrev_b32 v3, 4, v2''')
    for k in range(4):
        a(f'''s_add_u32 s12, s3, {k}
        s_and_b32 s12, s12, 3
        s_lshl_b32 s13, s14, 2
        s_add_u32 s12, s12, s13
        s_mul_i32 s12, s12, 76800
        v_add_u32 v{4+k}, s12, v3''')
    a('s_mul_i32 s12, s15, 384000')
    for k in range(5):
        a(f'v_add_u32 v{8+k}, s12, v3')
        if k < 4: a('s_add_u32 s12, s12, 76800')
    a('s_lshl_b32 s32, s3, 10\ns_waitcnt lgkmcnt(0)')
    a.srd(16, 6, AF_SZ, AF_OFF); a.srd(20, 6, BF_SZ, BF_OFF)
    def loads(i):
        sl = (i % NS)*36; out = []
        sb = 's32'
        pre = ''
        if i == 18:
            pre = f's_cmp_eq_u32 s3, 3\ns_cselect_b32 s33, {OOB}, s32\n'; sb = 's33'
        for k in range(5): out.append((pre if k == 0 else '')+f'buffer_load_dwordx4 {ar(sl+16+4*k,4)}, v{8+k}, s[20:23], {sb} offen')
        for k in range(4): out.append(f'buffer_load_dwordx4 {ar(sl+4*k,4)}, v{4+k}, s[16:19], s32 offen'+('\ns_add_u32 s32, s32, 4096' if k == 3 else ''))
        return out
    for i in range(NS):
        for x in loads(i): a(x)
    a.srd(24, 4, 2048*1280); a.srd(28, 8, 1280); a.srd(36, 10, 2048*1280)
    a('''s_lshl_b32 s12, s14, 2
    s_add_u32 s12, s12, s3
    s_lshl_b32 s12, s12, 4
    v_and_b32 v13, 15, v2
    v_add_u32 v13, s12, v13
    v_lshrrev_b32 v14, 5, v13
    v_and_b32 v13, 31, v13
    v_lshl_add_u32 v13, v13, 6, v14
    v_mul_u32_u24 v13, 1280, v13
    v_lshrrev_b32 v14, 4, v2
    v_mul_u32_u24 v14, 40, v14
    s_mul_i32 s12, s15, 160
    v_add_u32 v14, s12, v14
    v_add_u32 v13, v13, v14''')
    AC = 16; XR = 96; BR = 108
    acc = lambda sa, blk: AC+20*sa+4*blk
    for i in range(19):
        sl = (i % NS)*36
        issued = min(18, i+NS-1)
        extra = 6 if i > 19-NS-1+0 and i >= 19-NS else 0
        a(f's_waitcnt vmcnt({9*(issued-i)+(6 if i >= 19-NS+1 else 0)})')
        m = [f'v_mfma_f32_16x16x32_bf16 {vr(acc(sa,blk),4)}, {ar(sl+16+4*blk,4)}, {ar(sl+4*sa,4)}, {vr(acc(sa,blk),4) if i else 0}' for blk in range(5) for sa in range(4)]
        for x in m: a(x)
        if i+NS <= 18:
            for x in loads(i+NS): a(x)
        if i == 19-NS:
            a(f'''buffer_load_dwordx4 {vr(XR,4)}, v13, s[24:27], 0 offen
            buffer_load_dwordx4 {vr(XR+4,4)}, v13, s[24:27], 0 offen offset:16
            buffer_load_dwordx2 {vr(XR+8,2)}, v13, s[24:27], 0 offen offset:32
            buffer_load_dwordx4 {vr(BR,4)}, v14, s[28:31], 0 offen
            buffer_load_dwordx4 {vr(BR+4,4)}, v14, s[28:31], 0 offen offset:16
            buffer_load_dwordx2 {vr(BR+8,2)}, v14, s[28:31], 0 offen offset:32''')
    for k in range(1, 4):
        a(f'''s_add_u32 s12, s3, {k}
        s_and_b32 s12, s12, 3
        s_mul_i32 s12, s12, 15360
        s_add_u32 s12, s12, {(k-1)*5120}
        v_add_u32 v{4+k}, s12, v3''')
    a('s_mul_i32 s12, s3, 15360\nv_add_u32 v4, s12, v3')
    for k in range(1, 4):
        for blk in range(5): a(f'ds_write_b128 v{4+k}, {vr(acc(k,blk),4)} offset:{blk*1024}')
    a('s_waitcnt vmcnt(0)')
    for j in range(10):
        a(f'''v_lshlrev_b32 v{120+2*j}, 16, v{XR+j}
        v_and_b32 v{121+2*j}, 0xffff0000, v{XR+j}
        v_lshlrev_b32 v{140+2*j}, 16, v{BR+j}
        v_and_b32 v{141+2*j}, 0xffff0000, v{BR+j}
        v_pk_add_f32 {vr(AC+2*j,2)}, {vr(AC+2*j,2)}, {vr(120+2*j,2)}
        v_pk_add_f32 {vr(AC+2*j,2)}, {vr(AC+2*j,2)}, {vr(140+2*j,2)}''')
    a('s_waitcnt lgkmcnt(0)\ns_barrier')
    for k in range(3):
        for blk in range(5): a(f'ds_read_b128 {vr(120+20*k+4*blk,4)}, v4 offset:{k*5120+blk*1024}')
    for k in range(3):
        a(f's_waitcnt lgkmcnt({10-5*k})')
        for j in range(10): a(f'v_pk_add_f32 {vr(AC+2*j,2)}, {vr(AC+2*j,2)}, {vr(120+20*k+2*j,2)}')
    for j in range(10): a(f'v_cvt_pk_bf16_f32 v{XR+j}, v{AC+2*j}, v{AC+2*j+1}')
    a(f'''buffer_store_dwordx4 {vr(XR,4)}, v13, s[36:39], 0 offen
    buffer_store_dwordx4 {vr(XR+4,4)}, v13, s[36:39], 0 offen offset:16
    buffer_store_dwordx2 {vr(XR+8,2)}, v13, s[36:39], 0 offen offset:32
    K3_END:
    s_endpgm''')
    return descriptor('k3_kernel', 256+36*NS, 256)
```

```python
import sys
from common import *
from k1 import gen_k1
from k2 import gen_k2
from k3 import gen_k3
NAME = 'parallel_sum__spectral_gfnet__mixer_channel_mlp__prompt'
def build(opts):
    ref = open(f'cdna_kernels/{NAME}.s.ref').read().split('\n')
    hdr = [l for l in ref if l.startswith(';') and '@launch' not in l and 'Override' not in l and 'grid=ceil' not in l][:13]
    hdr += [f'; @launch kernel=k1_kernel grid=({384 if opts.get("pf") else 352},1,1) block=(256,1,1) lds=40960',
            '; @launch kernel=k2_kernel grid=(252,1,1) block=(256,1,1) lds=163840',
            f'; @launch kernel=k3_kernel grid=(256,1,1) block=(256,1,1) lds={opts.get("lds3", 90112)}']
    if opts.get('dup'):
        i = len(hdr)-4+int(opts['dup']); hdr.insert(i, hdr[i])
    for _ in range(int(opts.get('empty', 0))): hdr.append('; @launch kernel=k4_kernel grid=(256,1,1) block=(256,1,1) lds=0')
    a = Asm(); a.opts = opts; a.diag = bool(opts.get('diag'))
    a('.amdgcn_target "amdgcn-amd-amdhsa--gfx950"\n.text')
    d = gen_k1(a, opts.get('st1', '')) + gen_k2(a, opts.get('st2', '')) + gen_k3(a, int(opts.get('ns', 6)))
    if opts.get('empty'):
        a('.globl k4_kernel\n.p2align 8\n.type k4_kernel,@function\nk4_kernel:\ns_endpgm'); d += descriptor('k4_kernel', 32, 32)
    out = '\n'.join(hdr) + '\n' + a.text() + '.section .rodata,"a"\n'
    for blk in d.split('.end_amdhsa_kernel\n')[:-1]:
        out += '.p2align 6\n' + blk + '.end_amdhsa_kernel\n'
    return out
if __name__ == '__main__':
    opts = dict(x.split('=') for x in sys.argv[2:])
    opts = {k: v.replace('+', ' ') for k, v in opts.items()}
    path = sys.argv[1] if len(sys.argv) > 1 and sys.argv[1] != '-' else f'cdna_kernels/{NAME}.s'
    open(path, 'w').write(build(opts))
```

```python
import struct
def f2u(x): return struct.unpack('<I', struct.pack('<f', x))[0]
def fx(x): return '0x%08x' % f2u(x)
X1T_OFF, X1T_SZ = 0x0, 642*4096
WT_OFF,  WT_SZ  = 0x300000, 321*8192
YF_OFF,  YF_SZ  = 0x600000, 64*40*1024
AF_OFF,  AF_SZ  = 0x900000, 128*75*1024
BF_OFF,  BF_SZ  = 0x1300000, 40*75*1024
OOB = 0x40000000
DBG_OFF = 0x1700000
class Asm:
    def __init__(s): s.l = []; s.diag = False; s.kid = 0
    def stamp(s, k):
        if s.diag: s(f's_memrealtime s[{60+2*k}:{61+2*k}]\ns_waitcnt lgkmcnt(0)')
    def end(s, wait=True):
        if s.diag:
            s('s_waitcnt vmcnt(0)')
            s.stamp(7)
            if s.opts.get('clk'): s('s_memtime s[78:79]\ns_waitcnt lgkmcnt(0)\ns_sub_u32 s72, s78, s76')
            s(f'''s_load_dwordx2 s[92:93], s[0:1], 80
            s_waitcnt lgkmcnt(0)''')
            s.srd(88, 92, 0x100000, DBG_OFF)
            s(f'''s_lshl_b32 s92, s2, 2
            s_add_u32 s92, s92, s3
            s_lshl_b32 s92, s92, 5
            s_add_u32 s92, s92, {s.kid*0x10000}
            v_mov_b32 v1, 0
            s_mov_b64 exec, 1''')
            for k in range(8): s(f'v_mov_b32 v2, s{60+2*k}\nbuffer_store_dword v2, v1, s[88:91], s92 offen offset:{4*k}')
        s('s_endpgm')
    def __call__(s, t):
        for x in t.strip('\n').split('\n'):
            x = x.strip()
            if x: s.l.append(x if x.endswith(':') or x.startswith('.') else '    ' + x)
    def text(s): return '\n'.join(s.l) + '\n'
    def srd(s, d, p, size, off=0):
        if off:
            s(f's_add_u32 s{d}, s{p}, 0x{off:x}\ns_addc_u32 s{d+1}, s{p+1}, 0')
        else:
            s(f's_mov_b32 s{d}, s{p}\ns_mov_b32 s{d+1}, s{p+1}')
        s(f's_mov_b32 s{d+2}, 0x{size:x}\ns_mov_b32 s{d+3}, 0x00020000')
def vr(b, n=1): return f'v{b}' if n == 1 else f'v[{b}:{b+n-1}]'
def ar(b, n=1): return f'a{b}' if n == 1 else f'a[{b}:{b+n-1}]'
def header(a, name):
    a(f'.globl {name}\n.p2align 8\n.type {name},@function\n{name}:')
    a.kid = int(name[1])-1
    a.stamp(0)
    if a.diag and a.opts.get('clk'): a('s_memtime s[76:77]\ns_waitcnt lgkmcnt(0)')
    if a.diag:
        for k in range(1, 8): a(f's_mov_b32 s{60+2*k}, s60')
def descriptor(name, vgpr, accum, sgpr=96):
    return f'''.amdhsa_kernel {name}
  .amdhsa_next_free_vgpr {vgpr}
  .amdhsa_next_free_sgpr {sgpr}
  .amdhsa_accum_offset {accum}
  .amdhsa_group_segment_fixed_size 0
  .amdhsa_kernarg_size 88
  .amdhsa_user_sgpr_count 2
  .amdhsa_user_sgpr_kernarg_segment_ptr 1
  .amdhsa_system_sgpr_workgroup_id_x 1
.end_amdhsa_kernel
'''
```

```python
from common import *
def gen_k1(a, ST=''):
    header(a, 'k1_kernel')
    a('''s_cmp_ge_u32 s2, 416
    s_cbranch_scc1 K1_END
    s_load_dwordx4 s[4:7], s[0:1], 0
    s_load_dwordx2 s[8:9], s[0:1], 16
    s_load_dwordx2 s[10:11], s[0:1], 80
    v_lshrrev_b32 v1, 6, v0
    v_and_b32 v2, 63, v0
    v_readfirstlane_b32 s3, v1
    s_cmp_ge_u32 s2, 320
    s_cbranch_scc1 K1_TR''')
    a('''s_and_b32 s12, s2, 7
    s_lshl_b32 s12, s12, 3
    s_lshr_b32 s13, s2, 3
    s_and_b32 s15, s13, 7
    s_add_u32 s12, s12, s15
    s_lshr_b32 s13, s13, 3
    v_lshrrev_b32 v3, 3, v0
    v_and_b32 v4, 7, v0
    v_lshlrev_b32 v5, 6, v3
    v_add_u32 v5, s12, v5
    v_mul_u32_u24 v5, 1280, v5
    v_lshl_add_u32 v5, v4, 4, v5
    s_waitcnt lgkmcnt(0)''')
    a.srd(16, 4, 2048*1280)
    a.srd(20, 10, X1T_SZ, X1T_OFF)
    a.srd(24, 10, YF_SZ, YF_OFF)
    XF = 16
    TF = 96
    TM = 176
    D = 208
    for t in range(10):
        a(f'buffer_load_dwordx4 {vr(XF+8*t+4,4)}, v5, s[16:19], 0 offen offset:{t*128}')
    a(f'''s_lshl_b32 s15, s13, 2
    s_add_u32 s15, s15, s3
    s_cmp_ge_u32 s15, 10
    s_cselect_b32 s14, 1, 0
    s_mul_i32 s31, s14, 10
    s_sub_u32 s15, s15, s31
    s_mul_i32 s31, s14, 20480
    s_lshl_b32 s15, s15, 5
    v_and_b32 v6, 31, v2
    v_add_u32 v6, s15, v6
    v_and_b32 v7, 1, v6
    v_and_b32 v8, 0xfffffffe, v6
    v_add_u32 v8, s14, v8
    v_lshl_add_u32 v9, v8, 1, v7
    v_cmp_eq_u32 vcc, 1, v9
    v_mov_b32 v10, 320
    v_lshrrev_b32 v11, 5, v2
    v_cndmask_b32 v8, v8, v10, vcc
    v_cndmask_b32 v7, v7, 0, vcc
    v_lshl_add_u32 v9, v8, 1, v7
    v_lshlrev_b32 v9, 12, v9
    v_lshl_add_u32 v9, v11, 5, v9
    s_lshl_b32 s15, s12, 6
    v_add_u32 v9, s15, v9
    v_cvt_f32_u32 v8, v8
    v_cvt_f32_u32 v7, v7
    v_cvt_f32_u32 v10, v11
    v_mul_f32 v8, {fx(1/640)}, v8
    v_mul_f32 v7, 0.25, v7
    v_mul_f32 v10, {fx(8.0)}, v10
    v_fmac_f32 v7, v10, v8'''.replace('0.25', fx(0.25)))
    rb = [TM, TM+8, TM+16]
    a(f'v_mul_f32 v{D}, {fx(16.0)}, v8')
    for t in range(2):
        for j in range(8): a(f'v_fmamk_f32 v{rb[t]+j}, v8, {fx(float(16*t+j))}, v7')
    a(f'v_cos_f32 v{D}, v{D}')
    for t in range(2):
        for j in range(8): a(f'v_cos_f32 v{rb[t]+j}, v{rb[t]+j}')
    a(f'v_add_f32 v{D}, v{D}, v{D}')
    for t in range(20):
        if t >= 2:
            for j in range(8): a(f'v_fma_f32 v{rb[t%3]+j}, v{D}, v{rb[(t-1)%3]+j}, -v{rb[(t-2)%3]+j}')
        for j in range(4): a(f'v_cvt_pk_bf16_f32 v{TF+4*t+j}, v{rb[t%3]+2*j}, v{rb[t%3]+2*j+1}')
    a.stamp(1)
    a('v_and_b32 v6, 31, v2')
    for e in range(4):
        a(f'''v_add_u32 v10, {2*e}, v11
        v_xor_b32 v10, v10, v6
        v_lshlrev_b32 v10, 4, v10
        v_lshl_add_u32 v10, v11, 9, v10
        v_add_u32 v10, s31, v10
        v_add_u32 v{12+e}, {e*1024}, v10''')
    for t in range(10):
        a(f's_waitcnt vmcnt({9-t})')
        for k in range(4):
            src = XF+8*t+4+k
            a(f'v_lshlrev_b32 v{XF+8*t+2*k}, 16, v{src}\nv_and_b32 v{XF+8*t+2*k+1}, 0xffff0000, v{src}')
    a.stamp(2)
    P = lambda i: vr(XF+2*i, 2)
    for k in range(4): a(f'v_pk_add_f32 {vr(TM+2*k,2)}, {P(k)}, {P(k+4)}')
    for i in range(8, 40): a(f'v_pk_add_f32 {vr(TM+2*(i%4),2)}, {vr(TM+2*(i%4),2)}, {P(i)}')
    def red(dst):
        a(f'''v_pk_add_f32 {vr(TM,2)}, {vr(TM,2)}, {vr(TM+2,2)}
        v_pk_add_f32 {vr(TM+4,2)}, {vr(TM+4,2)}, {vr(TM+6,2)}
        s_nop 0
        v_pk_add_f32 {vr(TM,2)}, {vr(TM,2)}, {vr(TM+4,2)}
        s_nop 0
        v_add_f32 v{TM}, v{TM}, v{TM+1}
        s_nop 1
        v_add_f32_dpp v{TM+1}, v{TM}, v{TM} quad_perm:[1,0,3,2] row_mask:0xf bank_mask:0xf
        s_nop 1
        v_add_f32_dpp v{TM}, v{TM+1}, v{TM+1} quad_perm:[2,3,0,1] row_mask:0xf bank_mask:0xf
        s_nop 1
        v_add_f32_dpp v{TM+1}, v{TM}, v{TM} row_half_mirror row_mask:0xf bank_mask:0xf
        v_mul_f32 v{dst}, {fx(1/640)}, v{TM+1}''')
    M = TM+8
    red(M+2)
    a(f'v_sub_f32 v{M}, 0, v{M+2}\nv_sub_f32 v{M+1}, 0, v{M+2}')
    for i in range(40):
        d = vr(D+2*(i % 8), 2)
        a(f'v_pk_add_f32 {d}, {P(i)}, {vr(M,2)}')
        if i >= 4:
            k = i-4; dk = vr(D+2*(k % 8), 2); acc = vr(TM+2*(k % 4), 2)
            a(f'v_pk_mul_f32 {acc}, {dk}, {dk}' if k < 4 else f'v_pk_fma_f32 {acc}, {dk}, {dk}, {acc}')
    for k in range(36, 40):
        dk = vr(D+2*(k % 8), 2); acc = vr(TM+2*(k % 4), 2)
        a(f'v_pk_fma_f32 {acc}, {dk}, {dk}, {acc}')
    red(M+3)
    def rbf(dst, src):
        a(f'v_cvt_pk_bf16_f32 v{dst}, v{src}, v{src}\nv_and_b32 v{dst}, 0xffff0000, v{dst}')
    def rstd(dst, var):
        rbf(dst, var)
        a(f'v_add_f32 v{dst}, {fx(1e-5)}, v{dst}')
        rbf(dst, dst)
        a(f'v_sqrt_f32 v{dst}, v{dst}\ns_nop 0')
        rbf(dst, dst)
        a(f'v_rcp_f32 v{dst}, v{dst}\ns_nop 0')
    MB, R, OF, SG, M2, V2, R2, YA, YB = M+4, M+6, M+8, M+10, M+12, M+13, M+14, M+16, M+18
    rbf(MB, M+2); rstd(R, M+3)
    a(f'''v_mov_b32 v{R+1}, v{R}
    v_mul_f32 v{OF}, v{MB}, v{R}
    v_sub_f32 v{M2}, v{M+2}, v{MB}
    v_mul_f32 v{M2}, v{M2}, v{R}
    v_mul_f32 v{V2}, v{M+3}, v{R}
    v_mul_f32 v{V2}, v{V2}, v{R}
    v_mov_b32 v{YB}, v{OF}
    v_mul_f32 v{OF}, -2.0, v{OF}
    v_mov_b32 v{OF+1}, v{OF}
    v_lshlrev_b32 v10, 9, v4
    v_xor_b32 v6, v3, v4
    v_lshl_add_u32 v6, v6, 4, v10''')
    for t in range(5):
        for k in range(4):
            i = 4*t+k
            a(f'v_pk_add_f32 {vr(D+2*k,2)}, {P(i)}, {P(i+20)}')
            a(f'v_pk_add_f32 {vr(D+8+2*k,2)}, {P(i)}, {P(i+20)} neg_lo:[0,1] neg_hi:[0,1]')
        for k in range(4):
            a(f'v_pk_fma_f32 {vr(D+2*k,2)}, {vr(D+2*k,2)}, {vr(R,2)}, {vr(OF,2)}')
            a(f'v_pk_mul_f32 {vr(D+8+2*k,2)}, {vr(D+8+2*k,2)}, {vr(R,2)}')
        o = D+16+8*(t%2)
        for k in range(8): a(f'v_cvt_pk_bf16_f32 v{o+k}, v{D+2*k}, v{D+2*k+1}')
        a(f'ds_write_b128 v6, {vr(o,4)} offset:{t*4096}')
        a(f'ds_write_b128 v6, {vr(o+4,4)} offset:{20480+t*4096}')
    rbf(M2, M2); rstd(R2, V2)
    a(f'''v_add_f32 v{YB}, v{YB}, v{M2}
    v_mul_f32 v{YA}, v{R}, v{R2}
    v_mul_f32 v{YB}, v{YB}, v{R2}
    v_mov_b32 v{YA+1}, v{YA}
    v_sub_f32 v{YB}, 0, v{YB}
    v_lshl_add_u32 v10, v3, 4, v10
    v_mov_b32 v{YB+1}, v{YB}
    s_mul_i32 s15, s12, 40960
    s_lshl_b32 s28, s13, 13
    s_add_u32 s15, s15, s28
    s_add_u32 s28, s15, 4096''')
    for nt in range(5):
        if nt < 4: a(f's_cmp_lg_u32 s13, {nt}\ns_cbranch_scc1 K1_Y{nt+1}')
        for k in range(8): a(f'v_pk_fma_f32 {vr(D+2*k,2)}, {P(8*nt+k)}, {vr(YA,2)}, {vr(YB,2)}')
        if nt < 4: a(f's_branch K1_YS\nK1_Y{nt+1}:')
    a('K1_YS:')
    for k in range(8): a(f'v_cvt_pk_bf16_f32 v{TM+k}, v{D+2*k}, v{D+2*k+1}')
    a(f'buffer_store_dwordx4 {vr(TM,4)}, v10, s[24:27], s15 offen {ST}')
    a(f'buffer_store_dwordx4 {vr(TM+4,4)}, v10, s[24:27], s28 offen {ST}')
    a.stamp(3)
    a('s_waitcnt lgkmcnt(0)\ns_barrier')
    a.stamp(4)
    for ks in range(20): a(f'ds_read_b128 {vr(XF+4*ks,4)}, v{12+ks%4} offset:{(ks//4)*4096}')
    AC = D
    for ks in range(20):
        a(f's_waitcnt lgkmcnt({min(15,19-ks)})')
        a(f'v_mfma_f32_32x32x16_bf16 {vr(AC,16)}, {vr(XF+4*ks,4)}, {vr(TF+4*ks,4)}, {vr(AC,16) if ks else 0}')
    a('s_nop 7\ns_nop 3')
    a.stamp(5)
    for k in range(8): a(f'v_cvt_pk_bf16_f32 v{D+16+k}, v{AC+2*k}, v{AC+2*k+1}')
    a(f'''buffer_store_dwordx4 {vr(D+16,4)}, v9, s[20:23], 0 offen {ST}
    buffer_store_dwordx4 {vr(D+20,4)}, v9, s[20:23], 0 offen offset:16 {ST}''')
    a.end()
    a('''K1_TR:
    s_sub_u32 s12, s2, 320
    s_and_b32 s13, s12, 15
    s_lshr_b32 s12, s12, 4
    s_mul_i32 s12, s12, 54
    v_add_u32 v3, s12, v2
    v_lshlrev_b32 v3, 1, v3
    s_lshl_b32 s14, s13, 4
    s_add_u32 s14, s14, s3
    s_mul_i32 s14, s14, 5136
    s_waitcnt lgkmcnt(0)''')
    a.srd(16, 6, 2048*642); a.srd(20, 8, 2048*642); a.srd(24, 10, WT_SZ, WT_OFF)
    for k in range(8):
        for i in range(4):
            a(f'''s_add_u32 s15, s14, {(32*i+k)*642}
            buffer_load_ushort v{16+4*k+i}, v3, s[16:19], s15 offen
            buffer_load_ushort v{48+4*k+i}, v3, s[20:23], s15 offen''')
    a.stamp(1)
    a('''v_mul_u32_u24 v4, 528, v2
    s_lshl_b32 s15, s3, 7
    v_add_u32 v4, s15, v4
    v_lshrrev_b32 v7, 5, v0
    v_and_b32 v8, 31, v0
    v_mul_u32_u24 v5, 528, v7
    v_lshl_add_u32 v5, v8, 4, v5
    v_add_u32 v7, s12, v7
    v_lshlrev_b32 v6, 13, v7
    v_lshl_add_u32 v6, v8, 4, v6
    s_lshl_b32 s15, s13, 9''')
    for k in range(8):
        a(f's_waitcnt vmcnt({56-8*k})')
        for i in range(4): a(f'v_lshl_or_b32 v{16+4*k+i}, v{48+4*k+i}, 16, v{16+4*k+i}')
        a(f'ds_write_b128 v4, {vr(16+4*k,4)} offset:{k*16}')
    a.stamp(2)
    a('s_waitcnt lgkmcnt(0)\ns_barrier')
    a.stamp(3)
    for r in range(7): a(f'ds_read_b128 {vr(80+4*r,4)}, v5 offset:{r*8*528}')
    for r in range(7):
        a(f's_waitcnt lgkmcnt({6-r})\nbuffer_store_dwordx4 {vr(80+4*r,4)}, v6, s[24:27], s15 offen {ST}')
        if r < 6: a('s_add_u32 s15, s15, 0x10000')
    a.end()
    a('K1_END:\ns_endpgm')
    return descriptor('k1_kernel', 240, 240)
```

```python
from common import *
import math
def gen_gemm1(a, ST):
    a(f'''s_and_b32 s12, s2, 7
    s_lshr_b32 s13, s2, 3
    s_and_b32 s14, s13, 1
    s_lshl_b32 s12, s12, 1
    s_add_u32 s12, s12, s14
    s_lshr_b32 s13, s13, 1
    s_and_b32 s14, s3, 1
    s_lshr_b32 s15, s3, 1
    v_lshrrev_b32 v3, 3, v2
    v_and_b32 v4, 7, v2
    v_lshlrev_b32 v5, 1, v3
    v_and_b32 v5, 4, v5
    v_xor_b32 v4, v4, v5
    v_mul_u32_u24 v3, {int(a.opts.get('wpitch', 3456))}, v3
    v_lshl_add_u32 v3, v4, 4, v3
    v_lshlrev_b32 v4, 4, v2
    v_lshrrev_b32 v5, 5, v2
    v_lshlrev_b32 v6, 3, v5
    s_mul_i32 s32, s3, 55296
    s_mul_i32 s33, s13, 384
    s_add_u32 s32, s32, s33
    s_lshl_b32 s34, s12, 2
    s_add_u32 s34, s34, s3
    s_mul_i32 s34, s34, 40960
    s_mul_i32 s35, s14, 192
    s_add_u32 s35, s35, s33
    s_lshl_b32 s36, s3, 11
    s_lshl_b32 s37, s3, 12
    s_add_u32 s37, s37, 24576
    s_waitcnt lgkmcnt(0)''')
    a.srd(16, 4, 640*3456); a.srd(20, 10, YF_SZ, YF_OFF); a.srd(24, 6, 3456); a.srd(28, 10, AF_SZ, AF_OFF)
    BI = 160
    for fb in range(3):
        for g in range(4):
            a(f'buffer_load_dwordx2 {vr(BI+8*fb+2*g,2)}, v6, s[24:27], s35 offen offset:{fb*64+g*16}')
    def dma(st):
        slot = (st % 4)*40960
        out = []
        for fp in range(3):
            for kk in range(2):
                out.append(f'''s_add_u32 m0, s36, {slot+fp*8192+kk*1024}
                s_add_u32 s38, s32, {st*64*3456+kk*8*3456+fp*128}
                buffer_load_dwordx4 v3, s[16:19], s38 offen lds''')
        out.append(f'''s_add_u32 m0, s37, {slot}
        s_add_u32 s38, s34, {st*4096}
        buffer_load_dwordx4 v4, s[20:23], s38 offen lds''')
        for ks in range(1, 4): out.append(f'buffer_load_dwordx4 v4, s[20:23], s38 offen offset:{ks*1024} lds')
        return out
    for st in range(2):
        for x in dma(st): a(x)
    a.stamp(1)
    a('''v_bfe_u32 v7, v2, 2, 2
    v_and_b32 v8, 3, v2
    v_bfe_u32 v9, v2, 4, 1
    v_lshlrev_b32 v10, 10, v5
    v_lshl_add_u32 v10, v7, 7, v10
    v_lshl_add_u32 v10, v9, 5, v10
    v_lshl_add_u32 v10, v8, 3, v10
    v_lshrrev_b32 v7, 1, v7
    v_xor_b32 v7, s14, v7
    v_lshl_add_u32 v11, v7, 6, v10
    v_xor_b32 v12, 64, v11
    s_lshl_b32 s39, s14, 13
    s_lshl_b32 s40, s15, 13
    s_add_u32 s40, s40, 24576''')
    WA = 16
    for sl in range(4):
        a(f'''s_add_u32 s41, s39, {sl*40960}
        v_add_u32 v{WA+4*sl}, s41, v11
        s_add_u32 s41, s41, s39
        v_add_u32 v{WA+4*sl+1}, s41, v12
        s_add_u32 s41, s40, {sl*40960}
        v_add_u32 v{WA+4*sl+2}, s41, v4''')
    AC = 32
    FR = 128
    FB = [192, 212]
    acc = lambda fb, tb: AC+32*fb+16*tb
    a('s_waitcnt vmcnt(20)')
    for fb in range(3):
        for g in range(4):
            for p in range(2):
                src = BI+8*fb+2*g+p
                for tb in range(2):
                    d = acc(fb, tb)+4*g+2*p
                    a(f'v_lshlrev_b32 v{d}, 16, v{src}\nv_and_b32 v{d+1}, 0xffff0000, v{src}')
    def reads(st, ks, buf):
        sl = st % 4; b = FB[buf]; out = []
        for tb in range(2): out.append(f'ds_read_b128 {vr(b+12+4*tb,4)}, v{WA+4*sl+2} offset:{tb*4096+ks*1024}')
        for fb in range(3):
            reg = WA+4*sl+(1 if fb == 1 else 0); off = ks*2048+(8192 if fb == 2 else 0)
            for u in range(2): out.append(f'ds_read_b64_tr_b16 {vr(b+4*fb+2*u,2)}, v{reg} offset:{off+u*512}')
        return out
    def mf(buf):
        b = FB[buf]
        return [f'v_mfma_f32_32x32x16_bf16 {vr(acc(fb,tb),16)}, {vr(b+4*fb,4)}, {vr(b+12+4*tb,4)}, {vr(acc(fb,tb),16)}' for fb in range(3) for tb in range(2)]
    def weave(m, r, f):
        n = len(m); k = 0
        for i, x in enumerate(m):
            a(x)
            for y in r[3*i:3*i+3]: a(y)
            e = (len(f)*(i+1)+n-1)//n
            while k < e: a(f[k]); k += 1
    a('s_waitcnt vmcnt(10)\ns_barrier')
    a.stamp(2)
    for x in reads(0, 0, 0): a(x)
    buf = 0
    pend = dma(2)+dma(3)
    issued = {0: 10, 1: 10}
    order = [2]*10+[3]*10
    nq = 20
    def take(n):
        out = []
        for _ in range(n):
            if pend: out.append(pend.pop(0))
        return out
    total_issued = [20]
    for st in range(10):
        if st == 4: a.stamp(3)
        for ks in range(4):
            if ks < 3:
                a('s_waitcnt lgkmcnt(0)')
                f = take(5 if st == 0 else 3); total_issued[0] += len(f)
                weave(mf(buf), reads(st, ks+1, buf ^ 1), f)
            else:
                if st < 9:
                    a(f's_waitcnt lgkmcnt(0) vmcnt({total_issued[0]-10*(st+2)})\ns_barrier')
                    if st+4 <= 9: pend += dma(st+4)
                    m = mf(buf); r = reads(st+1, 0, buf ^ 1)
                    for x in r[:3]: a(x)
                    f = take(5 if st == 0 else 3); total_issued[0] += len(f)
                    weave(m, r[3:], f)
                else:
                    a('s_waitcnt lgkmcnt(0)')
                    weave(mf(buf), [], [])
            buf ^= 1
    assert not pend
    a.stamp(4)
    c0 = -2*math.log2(math.e)*math.sqrt(2/math.pi); c1 = c0*0.044715
    a(f'''s_mov_b32 s42, {fx(c1)}
    s_mov_b32 s43, s42
    v_mov_b32 v8, {fx(c0)}
    v_mov_b32 v9, {fx(c0)}
    v_bfe_u32 v6, v2, 4, 1
    v_mul_u32_u24 v6, 76800, v6
    v_lshl_add_u32 v6, v5, 9, v6
    v_and_b32 v7, 15, v2
    v_lshl_add_u32 v6, v7, 4, v6
    s_lshl_b32 s38, s12, 1
    s_add_u32 s38, s38, s15
    s_mul_i32 s38, s38, 307200
    s_mul_i32 s39, s13, 6144
    s_mul_i32 s40, s14, 3072
    s_add_u32 s38, s38, s39
    s_add_u32 s38, s38, s40
    s_add_u32 s39, s38, 153600
    s_nop 7''')
    T = 128
    n = 0
    for fb in range(3):
        for tb in range(2):
            x = acc(fb, tb); t = T+16*(n % 2); o = T+32+8*(n % 2); n += 1
            for k in range(8): a(f'v_pk_mul_f32 {vr(t+2*k,2)}, {vr(x+2*k,2)}, {vr(x+2*k,2)}')
            for k in range(8): a(f'v_pk_fma_f32 {vr(t+2*k,2)}, {vr(t+2*k,2)}, s[42:43], v[8:9]')
            for k in range(8): a(f'v_pk_mul_f32 {vr(t+2*k,2)}, {vr(t+2*k,2)}, {vr(x+2*k,2)}')
            for k in range(16): a(f'v_exp_f32 v{t+k}, v{t+k}')
            for k in range(8): a(f'v_pk_add_f32 {vr(t+2*k,2)}, {vr(t+2*k,2)}, 1.0 op_sel_hi:[1,0]')
            for k in range(16): a(f'v_rcp_f32 v{t+k}, v{t+k}')
            for k in range(8): a(f'v_pk_mul_f32 {vr(t+2*k,2)}, {vr(t+2*k,2)}, {vr(x+2*k,2)}')
            for k in range(8): a(f'v_cvt_pk_bf16_f32 v{o+k}, v{t+2*k}, v{t+2*k+1}')
            for tt in range(2):
                a(f'buffer_store_dwordx4 {vr(o+4*tt,4)}, v6, s[28:31], s{38+tb} offen offset:{fb*1024+tt*256} {ST}')
    a.stamp(5)
    a.end()

def gen_fft(a, ST):
    a(f'''s_sub_u32 s12, s2, 144
    s_lshl_b32 s13, s12, 2
    s_add_u32 s13, s13, s3
    s_lshl_b32 s14, s13, 13
    s_add_u32 s15, s14, 4096
    s_mov_b32 s33, s15
    s_cmp_eq_u32 s13, 0
    s_cselect_b32 s15, {OOB}, s15
    s_cmp_ge_u32 s13, 320
    s_cselect_b32 s15, {OOB}, s15
    v_and_b32 v3, 31, v2
    v_lshrrev_b32 v4, 5, v2
    v_lshlrev_b32 v5, 6, v3
    v_lshl_add_u32 v5, v4, 5, v5
    v_lshlrev_b32 v6, 4, v2
    s_waitcnt lgkmcnt(0)''')
    a.srd(16, 10, X1T_SZ, X1T_OFF); a.srd(20, 10, WT_SZ, WT_OFF); a.srd(28, 10, AF_SZ, AF_OFF)
    aXr = lambda b, t: ar(8*b+4*t, 4)
    aXi = lambda b, t: ar(16+8*b+4*t, 4)
    aC1, aS1, aN1, aC2, aS2 = 32, 40, 48, 56, 88
    c2 = lambda base, b, bp, t: ar(base+16*b+8*bp+4*t, 4)
    W = 16; ACC = 48; PK = 112; TW = 160
    for b in range(2):
        for t in range(2):
            a(f'buffer_load_dwordx4 {aXr(b,t)}, v5, s[16:19], s14 offen offset:{b*2048+t*16}')
            a(f'buffer_load_dwordx4 {aXi(b,t)}, v5, s[16:19], s15 offen offset:{b*2048+t*16}')
    for b in range(2):
        for g in range(4):
            a(f'buffer_load_dwordx4 {vr(W+16*b+4*g,4)}, v6, s[20:23], s{14 if b==0 else 33} offen offset:{g*1024}')
    a(f'''v_cvt_f32_u32 v7, v3
    v_lshlrev_b32 v8, 2, v4
    v_cvt_f32_u32 v8, v8
    v_and_b32 v15, 1, v2
    v_mul_u32_u24 v15, 0x8000, v15
    v_lshl_or_b32 v15, v15, 16, v15''')
    R = lambda e: 8*(e//4)+e % 4
    def angles(dst, scale, ladd=0.0, extra=None):
        a(f'v_add_f32 v9, {fx(ladd)}, v7\nv_mul_f32 v9, {fx(scale)}, v9\nv_mul_f32 v10, v9, v8')
        if extra: a(f'v_fmamk_f32 v10, v7, {fx(extra)}, v10')
        for e in range(16): a(f'v_fmamk_f32 v{dst+e}, v9, {fx(float(R(e)))}, v10')
    T0, T1, T2 = ACC, ACC+16, ACC+32
    P = PK
    angles(T0, 1/32)
    for e in range(16): a(f'v_cos_f32 v{T1+e}, v{T0+e}\nv_sin_f32 v{T2+e}, v{T0+e}')
    for k in range(8): a(f'v_cvt_pk_bf16_f32 v{P+k}, v{T1+2*k}, v{T1+2*k+1}\nv_cvt_pk_bf16_f32 v{P+8+k}, v{T2+2*k}, v{T2+2*k+1}\nv_cvt_pk_bf16_f32 v{P+16+k}, -v{T2+2*k}, -v{T2+2*k+1}')
    for k in range(24): a(f'v_accvgpr_write_b32 a{aC1+k}, v{P+k}')
    tw = lambda s, e: (TW+32*s+e, TW+32*s+16+e)
    for s_, (ladd, extra) in enumerate([(0.0, None), (0.0, 1/64), (32.0, None)]):
        angles(T0, 1/2048, ladd, extra)
        for e in range(16): a(f'v_cos_f32 v{tw(s_,e)[0]}, v{T0+e}\nv_sin_f32 v{tw(s_,e)[1]}, v{T0+e}')
    angles(T0, 1/64)
    for e in range(16): a(f'v_cos_f32 v{T1+e}, v{T0+e}\nv_sin_f32 v{T2+e}, v{T0+e}')
    for k in range(8): a(f'v_cvt_pk_bf16_f32 v{P+k}, v{T1+2*k}, v{T1+2*k+1}\nv_cvt_pk_bf16_f32 v{P+8+k}, v{T2+2*k}, v{T2+2*k+1}')
    for m, base in enumerate([aC2, aS2]):
        for k in range(8):
            s_ = P+8*m+k
            a(f'''v_xor_b32 v11, v15, v{s_}
            v_xor_b32 v12, 0x80000000, v{s_}
            v_accvgpr_write_b32 a{base+k}, v{s_}
            v_xor_b32 v13, 0x80000000, v11
            v_accvgpr_write_b32 a{base+8+k}, v11
            v_accvgpr_write_b32 a{base+16+k}, v12
            v_accvgpr_write_b32 a{base+24+k}, v13''')
    aR = lambda b: ACC+32*b
    aI = lambda b: ACC+32*b+16
    pk = lambda which, b, t=0: PK+16*which+8*b+4*t
    def mm(d, terms):
        for i, (x, y) in enumerate(terms):
            a(f'v_mfma_f32_32x32x16_bf16 {vr(d,16)}, {x}, {y}, {vr(d,16) if i else 0}')
    def cmul(b, getw, conj, neg):
        for e0 in range(0, 16, 4):
            ws = [getw(e0+j, j) for j in range(4)]
            for j in range(4):
                e = e0+j; c, s_ = ws[j]
                a(f'v_mul_f32 v{8+j}, v{aI(b)+e}, v{s_}\nv_mul_f32 v{12+j}, v{aR(b)+e}, v{s_}')
            for j in range(4):
                e = e0+j; c, s_ = ws[j]
                if conj:
                    a(f'v_fma_f32 v{aR(b)+e}, v{aR(b)+e}, v{c}, v{8+j}\nv_fma_f32 v{aI(b)+e}, v{aI(b)+e}, v{c}, -v{12+j}')
                else:
                    a(f'v_fma_f32 v{aR(b)+e}, v{aR(b)+e}, v{c}, -v{8+j}\nv_fma_f32 v{aI(b)+e}, v{aI(b)+e}, v{c}, v{12+j}')
        for k in range(8):
            r_, i_ = aR(b)+2*k, aI(b)+2*k
            a(f'v_cvt_pk_bf16_f32 v{pk(0,b)+k}, v{r_}, v{r_+1}\nv_cvt_pk_bf16_f32 v{pk(1,b)+k}, v{i_}, v{i_+1}')
            if neg is not None:
                q = r_ if neg == 'r' else i_
                a(f'v_cvt_pk_bf16_f32 v{pk(2,b)+k}, -v{q}, -v{q+1}')
    V4 = lambda r: vr(r, 4)
    a.stamp(1)
    a('s_waitcnt vmcnt(8)')
    a.stamp(2)
    for b in range(2):
        mm(aR(b), [(aXr(b,t), ar(aC1+4*t,4)) for t in range(2)]+[(aXi(b,t), ar(aS1+4*t,4)) for t in range(2)])
        mm(aI(b), [(aXi(b,t), ar(aC1+4*t,4)) for t in range(2)]+[(aXr(b,t), ar(aN1+4*t,4)) for t in range(2)])
    a('s_nop 7')
    for b in range(2):
        if b: a('s_nop 3')
        cmul(b, lambda e, j: tw(b, e), True, 'r')
    a('s_nop 1')
    ST4 = [(bp, t) for bp in range(2) for t in range(2)]
    for b in range(2):
        mm(aR(b), [(c2(aC2,b,bp,t), V4(pk(0,bp,t))) for bp, t in ST4]+[(c2(aS2,b,bp,t), V4(pk(1,bp,t))) for bp, t in ST4])
        mm(aI(b), [(c2(aC2,b,bp,t), V4(pk(1,bp,t))) for bp, t in ST4]+[(c2(aS2,b,bp,t), V4(pk(2,bp,t))) for bp, t in ST4])
    a.stamp(3)
    a('s_waitcnt vmcnt(0)\ns_nop 7\ns_nop 3')
    for b in range(2):
        def gw(e, j):
            w = W+16*b+e; c, s_ = TW+32+j, TW+36+j
            a(f'v_lshlrev_b32 v{c}, 16, v{w}\nv_and_b32 v{s_}, 0xffff0000, v{w}')
            return (c, s_)
        cmul(b, gw, False, 'i')
    a('s_nop 1')
    for b in range(2):
        mm(aR(b), [(V4(pk(0,bp,t)), c2(aC2,b,bp,t)) for bp, t in ST4]+[(V4(pk(2,bp,t)), c2(aS2,b,bp,t)) for bp, t in ST4])
        mm(aI(b), [(V4(pk(1,bp,t)), c2(aC2,b,bp,t)) for bp, t in ST4]+[(V4(pk(0,bp,t)), c2(aS2,b,bp,t)) for bp, t in ST4])
    a('s_nop 7\ns_nop 3')
    for b in range(2): cmul(b, lambda e, j: tw(2*b, e), False, None)
    a('s_nop 1')
    for b in range(2):
        mm(aR(b), [(ar(aC1+4*t,4), V4(pk(0,b,t))) for t in range(2)]+[(ar(aN1+4*t,4), V4(pk(1,b,t))) for t in range(2)])
        mm(aI(b), [(ar(aC1+4*t,4), V4(pk(1,b,t))) for t in range(2)]+[(ar(aS1+4*t,4), V4(pk(0,b,t))) for t in range(2)])
    a.stamp(4)
    a('''v_mul_u32_u24 v5, 4160, v4
    v_lshl_add_u32 v5, v3, 4, v5
    s_lshl_b32 s14, s3, 2
    v_add_u32 v5, s14, v5
    v_and_b32 v6, 31, v0
    v_mul_u32_u24 v6, 1040, v6
    v_lshrrev_b32 v7, 5, v0
    v_lshl_add_u32 v6, v7, 4, v6
    v_lshrrev_b32 v7, 4, v0
    v_mul_u32_u24 v7, 76800, v7
    v_and_b32 v8, 15, v0
    v_lshl_add_u32 v7, v8, 4, v7
    s_lshl_b32 s14, s12, 8
    s_add_u32 s14, s14, 55296''')
    for b in range(2):
        if b: a('s_nop 7')
        for e in range(16):
            a(f'v_cvt_pk_bf16_f32 v{PK+16*b+e}, v{aR(b)+e}, v{aI(b)+e}')
        for e in range(16):
            a(f'ds_write_b32 v5, v{PK+16*b+e} offset:{(R(e)*65+32*b)*16}')
    a('s_waitcnt lgkmcnt(0)\ns_barrier')
    a.stamp(5)
    for r in range(8): a(f'ds_read_b128 {vr(16+4*r,4)}, v6 offset:{r*128}')
    a('s_mov_b32 s15, s14')
    for r in range(8):
        a(f's_waitcnt lgkmcnt({7-r})\nbuffer_store_dwordx4 {vr(16+4*r,4)}, v7, s[28:31], s15 offen {ST}\ns_add_u32 s15, s15, {16*76800}')
    a('s_cmp_lg_u32 s12, 80\ns_cbranch_scc1 K2_FEND')
    for k in range(4): a(f'v_mov_b32 v{60+k}, 0')
    for r in range(8):
        for q in range(1, 4): a(f'buffer_store_dwordx4 v[60:63], v7, s[28:31], s14 offen offset:{q*256} {ST}')
        a(f's_add_u32 s14, s14, {16*76800}')
    a('K2_FEND:')
    a.end()

def gen_side(a, ST):
    a('''s_sub_u32 s12, s2, 225
    s_mul_i32 s13, s12, 81920
    s_mul_i32 s14, s3, 20480
    s_add_u32 s13, s13, s14
    v_lshlrev_b32 v3, 4, v2
    s_waitcnt lgkmcnt(0)''')
    a.srd(16, 8, 1728*1280); a.srd(20, 10, BF_SZ, BF_OFF)
    for p in range(5):
        a(f's_add_u32 m0, s14, {p*4096}\ns_add_u32 s15, s13, {p*4096}')
        for k in range(4): a(f'buffer_load_dwordx4 v3, s[16:19], s15 offen offset:{k*1024} lds')
    sc = 1.0/(320*2048)
    a(f'''s_lshl_b32 s24, s12, 2
    s_add_u32 s24, s24, s3
    s_cmp_ge_u32 s24, 105
    s_cbranch_scc1 K2_S_NOTG
    s_mul_i32 s25, s24, 52429
    s_lshr_b32 s25, s25, 18
    s_mul_i32 s26, s25, 5
    s_sub_u32 s26, s24, s26
    v_and_b32 v4, 15, v2
    v_lshrrev_b32 v5, 4, v2
    v_lshrrev_b32 v6, 2, v4
    v_mul_u32_u24 v6, 20, v6
    v_and_b32 v4, 3, v4
    v_add_u32 v4, v4, v6
    s_lshl_b32 s27, s26, 2
    v_add_u32 v4, s27, v4
    v_cvt_f32_u32 v4, v4
    s_lshl_b32 s27, s25, 4
    v_lshl_add_u32 v5, v5, 2, s27
    v_mov_b32 v7, {fx(sc)}
    v_mov_b32 v8, {fx(sc/2)}
    v_mov_b32 v9, {fx(-sc)}
    s_mul_i32 s27, s26, 76800
    s_add_u32 s25, s25, 54
    s_lshl_b32 s25, s25, 10
    s_add_u32 s27, s27, s25''')
    for cc in range(4):
        a(f'''v_add_u32 v6, {cc}, v5
        v_cvt_f32_u32 v{16+cc}, v6
        v_cmp_eq_u32 vcc, 0, v6
        v_cmp_le_u32 s[28:29], v10, v6
        v_cmp_lt_u32 s[30:31], v10, v6
        s_or_b64 s[28:29], s[28:29], vcc
        s_nop 1
        v_cndmask_b32 v{20+cc}, v7, v8, s[28:29]
        v_cndmask_b32 v{24+cc}, v9, 0, s[28:29]
        v_cndmask_b32 v{20+cc}, v{20+cc}, 0, s[30:31]'''.replace('v_add_u32 v6', 'v_mov_b32 v10, 320\nv_add_u32 v6'))
    for nt in range(8):
        a(f'v_add_f32 v11, {fx(80.0*nt)}, v4')
        for cc in range(4): a(f'v_mul_f32 v{28+cc}, v11, v{16+cc}')
        for cc in range(4): a(f'v_mul_f32 v{28+cc}, {fx(1/640)}, v{28+cc}')
        for cc in range(4): a(f'v_fract_f32 v{28+cc}, v{28+cc}')
        for cc in range(4): a(f'v_cos_f32 v{32+cc}, v{28+cc}\nv_sin_f32 v{36+cc}, v{28+cc}')
        for cc in range(4): a(f'v_mul_f32 v{32+cc}, v{32+cc}, v{20+cc}\nv_mul_f32 v{36+cc}, v{36+cc}, v{24+cc}')
        o = 40+4*nt
        for cc in range(4): a(f'v_cvt_pk_bf16_f32 v{o+cc}, v{32+cc}, v{36+cc}')
        a(f'buffer_store_dwordx4 {vr(o,4)}, v3, s[20:23], s27 offen {ST}\ns_add_u32 s27, s27, {5*76800}')
    a('''K2_S_NOTG:
    v_bfe_u32 v4, v2, 4, 1
    v_lshrrev_b32 v5, 5, v2
    v_bfe_u32 v6, v2, 2, 2
    v_and_b32 v7, 3, v2
    v_lshl_add_u32 v6, v5, 2, v6
    v_lshl_add_u32 v6, v4, 4, v6
    v_mul_u32_u24 v6, 1280, v6
    v_mul_u32_u24 v7, 40, v7
    s_mul_i32 s14, s3, 320
    v_add3_u32 v6, v6, v7, s14
    v_add_u32 v7, 40960, v6
    s_mul_i32 s15, s3, 768000
    s_lshl_b32 s13, s12, 11
    s_add_u32 s15, s15, s13
    s_waitcnt vmcnt(0)
    s_barrier''')
    a.stamp(2)
    for ks in range(2):
        for nb in range(10):
            o = 80+40*ks+4*nb
            off = (nb//5)*160+(nb % 5)*8
            for u in range(2): a(f'ds_read_b64_tr_b16 {vr(o+2*u,2)}, v{6+ks} offset:{off+u*10240}')
        a('s_waitcnt lgkmcnt(0)')
        for nb in range(10):
            o = 80+40*ks+4*nb
            a(f's_add_u32 s13, s15, {nb*76800+ks*1024}\nbuffer_store_dwordx4 {vr(o,4)}, v3, s[20:23], s13 offen {ST}')
    a.end()

def gen_k2(a, ST=''):
    header(a, 'k2_kernel')
    a(f'''s_cmp_ge_u32 s2, {a.opts.get('k2n', 252)}
    s_cbranch_scc1 K2_END
    s_load_dwordx4 s[4:7], s[0:1], 32
    s_load_dwordx2 s[8:9], s[0:1], 48
    s_load_dwordx2 s[10:11], s[0:1], 80
    v_lshrrev_b32 v1, 6, v0
    v_and_b32 v2, 63, v0
    v_readfirstlane_b32 s3, v1
    s_cmp_ge_u32 s2, 225
    s_cbranch_scc1 K2_SIDE
    s_cmp_ge_u32 s2, 144
    s_cbranch_scc1 K2_FFT''')
    gen_gemm1(a, ST)
    a('K2_FFT:'); gen_fft(a, ST)
    a('K2_SIDE:'); gen_side(a, ST)
    a('K2_END:\ns_endpgm')
    return descriptor('k2_kernel', 256+120, 256)
```

```python
from common import *
def gen_k3(a, NS=6):
    header(a, 'k3_kernel')
    a('''s_cmp_ge_u32 s2, 256
    s_cbranch_scc1 K3_END
    s_load_dwordx2 s[4:5], s[0:1], 0
    s_load_dwordx4 s[8:11], s[0:1], 56
    s_load_dwordx2 s[6:7], s[0:1], 80
    v_lshrrev_b32 v1, 6, v0
    v_and_b32 v2, 63, v0
    v_readfirstlane_b32 s3, v1
    s_and_b32 s12, s2, 7
    s_lshr_b32 s13, s2, 3
    s_lshr_b32 s14, s12, 1
    s_lshl_b32 s14, s14, 3
    s_lshr_b32 s15, s13, 2
    s_add_u32 s14, s14, s15
    s_and_b32 s12, s12, 1
    s_lshl_b32 s12, s12, 2
    s_and_b32 s13, s13, 3
    s_add_u32 s15, s12, s13
    v_lshlrev_b32 v3, 4, v2''')
    for k in range(4):
        a(f'''s_add_u32 s12, s3, {k}
        s_and_b32 s12, s12, 3
        s_lshl_b32 s13, s14, 2
        s_add_u32 s12, s12, s13
        s_mul_i32 s12, s12, 76800
        v_add_u32 v{4+k}, s12, v3''')
    a('s_mul_i32 s12, s15, 384000')
    for k in range(5):
        a(f'v_add_u32 v{8+k}, s12, v3')
        if k < 4: a('s_add_u32 s12, s12, 76800')
    a('s_lshl_b32 s32, s3, 10\ns_waitcnt lgkmcnt(0)')
    a.srd(16, 6, AF_SZ, AF_OFF); a.srd(20, 6, BF_SZ, BF_OFF)
    def loads(i):
        sl = (i % NS)*36; out = []
        sb = 's32'
        pre = ''
        if i == 18:
            pre = f's_cmp_eq_u32 s3, 3\ns_cselect_b32 s33, {OOB}, s32\n'; sb = 's33'
        for k in range(5): out.append((pre if k == 0 else '')+f'buffer_load_dwordx4 {ar(sl+16+4*k,4)}, v{8+k}, s[20:23], {sb} offen')
        for k in range(4): out.append(f'buffer_load_dwordx4 {ar(sl+4*k,4)}, v{4+k}, s[16:19], s32 offen'+('\ns_add_u32 s32, s32, 4096' if k == 3 else ''))
        return out
    for i in range(NS-1):
        for x in loads(i): a(x)
    CP = a.cpf('k3_kernel', 'K3_END', 1, vt=240)
    a.stamp(1)
    a.srd(24, 4, 2048*1280); a.srd(28, 8, 1280); a.srd(36, 10, 2048*1280)
    a('''s_lshl_b32 s12, s14, 2
    s_add_u32 s12, s12, s3
    s_lshl_b32 s12, s12, 4
    v_and_b32 v13, 15, v2
    v_add_u32 v13, s12, v13
    v_lshrrev_b32 v14, 5, v13
    v_and_b32 v13, 31, v13
    v_lshl_add_u32 v13, v13, 6, v14
    v_mul_u32_u24 v13, 1280, v13
    v_lshrrev_b32 v14, 4, v2
    v_mul_u32_u24 v14, 40, v14
    s_mul_i32 s12, s15, 160
    v_add_u32 v14, s12, v14
    v_add_u32 v13, v13, v14''')
    AC = 16; XR = 96; BR = 108
    acc = lambda sa, blk: AC+20*sa+4*blk
    XL = [f'buffer_load_dwordx4 {vr(XR,4)}, v13, s[24:27], 0 offen',
          f'buffer_load_dwordx4 {vr(XR+4,4)}, v13, s[24:27], 0 offen offset:16',
          f'buffer_load_dwordx2 {vr(XR+8,2)}, v13, s[24:27], 0 offen offset:32',
          f'buffer_load_dwordx4 {vr(BR,4)}, v14, s[28:31], 0 offen',
          f'buffer_load_dwordx4 {vr(BR+4,4)}, v14, s[28:31], 0 offen offset:16',
          f'buffer_load_dwordx2 {vr(BR+8,2)}, v14, s[28:31], 0 offen offset:32']
    for i in range(19):
        sl = (i % NS)*36
        issued = min(18, i+NS-2)
        a(f's_waitcnt vmcnt({9*(issued-i)+(6 if i > 20-NS else 0)+(CP if i < NS-1 else 0)})')
        if i in (0, 6, 12): a.stamp(2+i//6)
        m = [f'v_mfma_f32_16x16x32_bf16 {vr(acc(sa,blk),4)}, {ar(sl+16+4*blk,4)}, {ar(sl+4*sa,4)}, {vr(acc(sa,blk),4) if i else 0}' for blk in range(5) for sa in range(4)]
        f = loads(i+NS-1) if i+NS-1 <= 18 else (XL if i == 20-NS else [])
        for j, x in enumerate(m):
            a(x)
            if j % 2 == 0 and j//2 < len(f): a(f[j//2])
    a.stamp(5)
    for k in range(1, 4):
        a(f'''s_add_u32 s12, s3, {k}
        s_and_b32 s12, s12, 3
        s_mul_i32 s12, s12, 15360
        s_add_u32 s12, s12, {(k-1)*5120}
        v_add_u32 v{4+k}, s12, v3''')
    a('s_mul_i32 s12, s3, 15360\nv_add_u32 v4, s12, v3')
    for k in range(1, 4):
        for blk in range(5): a(f'ds_write_b128 v{4+k}, {vr(acc(k,blk),4)} offset:{blk*1024}')
    a('s_waitcnt vmcnt(0)')
    for j in range(10):
        a(f'''v_lshlrev_b32 v{120+2*j}, 16, v{XR+j}
        v_and_b32 v{121+2*j}, 0xffff0000, v{XR+j}
        v_lshlrev_b32 v{140+2*j}, 16, v{BR+j}
        v_and_b32 v{141+2*j}, 0xffff0000, v{BR+j}
        v_pk_add_f32 {vr(AC+2*j,2)}, {vr(AC+2*j,2)}, {vr(120+2*j,2)}
        v_pk_add_f32 {vr(AC+2*j,2)}, {vr(AC+2*j,2)}, {vr(140+2*j,2)}''')
    a('s_waitcnt lgkmcnt(0)\ns_barrier')
    a.stamp(6)
    for k in range(3):
        for blk in range(5): a(f'ds_read_b128 {vr(120+20*k+4*blk,4)}, v4 offset:{k*5120+blk*1024}')
    for k in range(3):
        a(f's_waitcnt lgkmcnt({10-5*k})')
        for j in range(10): a(f'v_pk_add_f32 {vr(AC+2*j,2)}, {vr(AC+2*j,2)}, {vr(120+20*k+2*j,2)}')
    for j in range(10): a(f'v_cvt_pk_bf16_f32 v{XR+j}, v{AC+2*j}, v{AC+2*j+1}')
    a(f'''buffer_store_dwordx4 {vr(XR,4)}, v13, s[36:39], 0 offen
    buffer_store_dwordx4 {vr(XR+4,4)}, v13, s[36:39], 0 offen offset:16
    buffer_store_dwordx2 {vr(XR+8,2)}, v13, s[36:39], 0 offen offset:32''')
    a.end()
    a('K3_END:\ns_endpgm')
    return descriptor('k3_kernel', 256+36*NS, 256)
```

```python
import struct
def f2u(x): return struct.unpack('<I', struct.pack('<f', x))[0]
def fx(x): return '0x%08x' % f2u(x)
X1T_OFF, X1T_SZ = 0x0, 642*4096
WT_OFF,  WT_SZ  = 0x300000, 321*8192
YF_OFF,  YF_SZ  = 0x600000, 64*40*1024
AF_OFF,  AF_SZ  = 0x900000, 128*75*1024
BF_OFF,  BF_SZ  = 0x1300000, 40*75*1024
OOB = 0x40000000
DBG_OFF = 0x1700000
class Asm:
    def __init__(s): s.l = []; s.diag = False; s.kid = 0
    def stamp(s, k):
        if s.diag: s(f's_memrealtime s[{60+2*k}:{61+2*k}]\ns_waitcnt lgkmcnt(0)')
    def end(s, wait=True):
        if s.diag:
            s('s_waitcnt vmcnt(0)')
            s.stamp(7)
            if s.opts.get('clk'): s('s_memtime s[78:79]\ns_waitcnt lgkmcnt(0)\ns_sub_u32 s72, s78, s76')
            s(f'''s_load_dwordx2 s[92:93], s[0:1], 80
            s_waitcnt lgkmcnt(0)''')
            s.srd(88, 92, 0x100000, DBG_OFF)
            s(f'''s_lshl_b32 s92, s2, 2
            s_add_u32 s92, s92, s3
            s_lshl_b32 s92, s92, 5
            s_add_u32 s92, s92, {s.kid*0x10000}
            v_mov_b32 v1, 0
            s_mov_b64 exec, 1''')
            for k in range(8): s(f'v_mov_b32 v2, s{60+2*k}\nbuffer_store_dword v2, v1, s[88:91], s92 offen offset:{4*k}')
        s('s_endpgm')
    def cpf(s, lo, hi, n, sp=46, vt=240, dst=None, tag=[0]):
        if not s.opts.get('cpf'): return 0
        tag[0] += 1; L = f'CPF{tag[0]}'
        s(f'''s_getpc_b64 s[{sp}:{sp+1}]
        {L}:
        s_add_u32 s{sp}, s{sp}, {lo}-{L}
        s_addc_u32 s{sp+1}, s{sp+1}, ({lo}-{L})>>32''')
        for k in range(n):
            s(f'''v_lshlrev_b32 v{vt}, 6, v0
            v_add_u32 v{vt}, {k*16384}, v{vt}
            v_min_u32 v{vt}, {hi}-{lo}-4, v{vt}
            v_mov_b32 v{vt+1}, s{sp+1}
            v_add_co_u32 v{vt}, vcc, s{sp}, v{vt}
            v_addc_co_u32 v{vt+1}, vcc, 0, v{vt+1}, vcc
            global_load_dword v{dst or vt+2+k}, v[{vt}:{vt+1}], off''')
        return n
    def __call__(s, t):
        for x in t.strip('\n').split('\n'):
            x = x.strip()
            if x: s.l.append(x if x.endswith(':') or x.startswith('.') else '    ' + x)
    def text(s): return '\n'.join(s.l) + '\n'
    def srd(s, d, p, size, off=0):
        if off:
            s(f's_add_u32 s{d}, s{p}, 0x{off:x}\ns_addc_u32 s{d+1}, s{p+1}, 0')
        else:
            s(f's_mov_b32 s{d}, s{p}\ns_mov_b32 s{d+1}, s{p+1}')
        s(f's_mov_b32 s{d+2}, 0x{size:x}\ns_mov_b32 s{d+3}, 0x00020000')
def vr(b, n=1): return f'v{b}' if n == 1 else f'v[{b}:{b+n-1}]'
def ar(b, n=1): return f'a{b}' if n == 1 else f'a[{b}:{b+n-1}]'
def header(a, name):
    a(f'.globl {name}\n.p2align 8\n.type {name},@function\n{name}:')
    a.kid = int(name[1])-1
    a.stamp(0)
    if a.diag and a.opts.get('clk'): a('s_memtime s[76:77]\ns_waitcnt lgkmcnt(0)')
    if a.diag:
        for k in range(1, 8): a(f's_mov_b32 s{60+2*k}, s60')
def descriptor(name, vgpr, accum, sgpr=96):
    return f'''.amdhsa_kernel {name}
  .amdhsa_next_free_vgpr {vgpr}
  .amdhsa_next_free_sgpr {sgpr}
  .amdhsa_accum_offset {accum}
  .amdhsa_group_segment_fixed_size 0
  .amdhsa_kernarg_size 88
  .amdhsa_user_sgpr_count 2
  .amdhsa_user_sgpr_kernarg_segment_ptr 1
  .amdhsa_system_sgpr_workgroup_id_x 1
.end_amdhsa_kernel
'''
```

```python
from common import *
def gen_k1(a, ST=''):
    header(a, 'k1_kernel')
    PF = int(a.opts.get('pf', 0))
    a(f'''s_cmp_ge_u32 s2, {448 if PF else 416}
    s_cbranch_scc1 K1_END
    s_load_dwordx4 s[4:7], s[0:1], 0
    s_load_dwordx2 s[8:9], s[0:1], 16
    s_load_dwordx2 s[10:11], s[0:1], 80
    v_lshrrev_b32 v1, 6, v0
    v_and_b32 v2, 63, v0
    v_readfirstlane_b32 s3, v1''')
    a.cpf('k1_kernel', 'K1_END', 1, vt=232, dst=20)
    a('''s_cmp_ge_u32 s2, 320
    s_cbranch_scc1 K1_TR''')
    a('''s_and_b32 s12, s2, 7
    s_lshl_b32 s12, s12, 3
    s_lshr_b32 s13, s2, 3
    s_and_b32 s15, s13, 7
    s_add_u32 s12, s12, s15
    s_lshr_b32 s13, s13, 3
    v_lshrrev_b32 v3, 3, v0
    v_and_b32 v4, 7, v0
    v_lshlrev_b32 v5, 6, v3
    v_add_u32 v5, s12, v5
    v_mul_u32_u24 v5, 1280, v5
    v_lshl_add_u32 v5, v4, 4, v5
    s_waitcnt lgkmcnt(0)''')
    a.srd(16, 4, 2048*1280)
    a.srd(20, 10, X1T_SZ, X1T_OFF)
    a.srd(24, 10, YF_SZ, YF_OFF)
    XF = 16
    TF = 96
    TM = 176
    D = 208
    for t in range(10):
        a(f'buffer_load_dwordx4 {vr(XF+8*t+4,4)}, v5, s[16:19], 0 offen offset:{t*128}')
    a(f'''s_lshl_b32 s15, s13, 2
    s_add_u32 s15, s15, s3
    s_cmp_ge_u32 s15, 10
    s_cselect_b32 s14, 1, 0
    s_mul_i32 s31, s14, 10
    s_sub_u32 s15, s15, s31
    s_mul_i32 s31, s14, 20480
    s_lshl_b32 s15, s15, 5
    v_and_b32 v6, 31, v2
    v_add_u32 v6, s15, v6
    v_and_b32 v7, 1, v6
    v_and_b32 v8, 0xfffffffe, v6
    v_add_u32 v8, s14, v8
    v_lshl_add_u32 v9, v8, 1, v7
    v_cmp_eq_u32 vcc, 1, v9
    v_mov_b32 v10, 320
    v_lshrrev_b32 v11, 5, v2
    v_cndmask_b32 v8, v8, v10, vcc
    v_cndmask_b32 v7, v7, 0, vcc
    v_lshl_add_u32 v9, v8, 1, v7
    v_lshlrev_b32 v9, 12, v9
    v_lshl_add_u32 v9, v11, 5, v9
    s_lshl_b32 s15, s12, 6
    v_add_u32 v9, s15, v9
    v_cvt_f32_u32 v8, v8
    v_cvt_f32_u32 v7, v7
    v_cvt_f32_u32 v10, v11
    v_mul_f32 v8, {fx(1/640)}, v8
    v_mul_f32 v7, 0.25, v7
    v_mul_f32 v10, {fx(8.0)}, v10
    v_fmac_f32 v7, v10, v8'''.replace('0.25', fx(0.25)))
    rb = [TM, TM+8, TM+16]
    a(f'v_mul_f32 v{D}, {fx(16.0)}, v8')
    for t in range(2):
        for j in range(8): a(f'v_fmamk_f32 v{rb[t]+j}, v8, {fx(float(16*t+j))}, v7')
    a(f'v_cos_f32 v{D}, v{D}')
    for t in range(2):
        for j in range(8): a(f'v_cos_f32 v{rb[t]+j}, v{rb[t]+j}')
    a(f'v_add_f32 v{D}, v{D}, v{D}')
    for t in range(20):
        if t >= 2:
            for j in range(8): a(f'v_fma_f32 v{rb[t%3]+j}, v{D}, v{rb[(t-1)%3]+j}, -v{rb[(t-2)%3]+j}')
        for j in range(4): a(f'v_cvt_pk_bf16_f32 v{TF+4*t+j}, v{rb[t%3]+2*j}, v{rb[t%3]+2*j+1}')
    a.stamp(1)
    a('v_and_b32 v6, 31, v2')
    for e in range(4):
        a(f'''v_add_u32 v10, {2*e}, v11
        v_xor_b32 v10, v10, v6
        v_lshlrev_b32 v10, 4, v10
        v_lshl_add_u32 v10, v11, 9, v10
        v_add_u32 v10, s31, v10
        v_add_u32 v{12+e}, {e*1024}, v10''')
    for t in range(10):
        a(f's_waitcnt vmcnt({9-t})')
        for k in range(4):
            src = XF+8*t+4+k
            a(f'v_lshlrev_b32 v{XF+8*t+2*k}, 16, v{src}\nv_and_b32 v{XF+8*t+2*k+1}, 0xffff0000, v{src}')
    a.stamp(2)
    P = lambda i: vr(XF+2*i, 2)
    for k in range(4): a(f'v_pk_add_f32 {vr(TM+2*k,2)}, {P(k)}, {P(k+4)}')
    for i in range(8, 40): a(f'v_pk_add_f32 {vr(TM+2*(i%4),2)}, {vr(TM+2*(i%4),2)}, {P(i)}')
    def red(dst):
        a(f'''v_pk_add_f32 {vr(TM,2)}, {vr(TM,2)}, {vr(TM+2,2)}
        v_pk_add_f32 {vr(TM+4,2)}, {vr(TM+4,2)}, {vr(TM+6,2)}
        s_nop 0
        v_pk_add_f32 {vr(TM,2)}, {vr(TM,2)}, {vr(TM+4,2)}
        s_nop 0
        v_add_f32 v{TM}, v{TM}, v{TM+1}
        s_nop 1
        v_add_f32_dpp v{TM+1}, v{TM}, v{TM} quad_perm:[1,0,3,2] row_mask:0xf bank_mask:0xf
        s_nop 1
        v_add_f32_dpp v{TM}, v{TM+1}, v{TM+1} quad_perm:[2,3,0,1] row_mask:0xf bank_mask:0xf
        s_nop 1
        v_add_f32_dpp v{TM+1}, v{TM}, v{TM} row_half_mirror row_mask:0xf bank_mask:0xf
        v_mul_f32 v{dst}, {fx(1/640)}, v{TM+1}''')
    M = TM+8
    red(M+2)
    a(f'v_sub_f32 v{M}, 0, v{M+2}\nv_sub_f32 v{M+1}, 0, v{M+2}')
    for i in range(40):
        d = vr(D+2*(i % 8), 2)
        a(f'v_pk_add_f32 {d}, {P(i)}, {vr(M,2)}')
        if i >= 4:
            k = i-4; dk = vr(D+2*(k % 8), 2); acc = vr(TM+2*(k % 4), 2)
            a(f'v_pk_mul_f32 {acc}, {dk}, {dk}' if k < 4 else f'v_pk_fma_f32 {acc}, {dk}, {dk}, {acc}')
    for k in range(36, 40):
        dk = vr(D+2*(k % 8), 2); acc = vr(TM+2*(k % 4), 2)
        a(f'v_pk_fma_f32 {acc}, {dk}, {dk}, {acc}')
    red(M+3)
    def rbf(dst, src):
        a(f'v_cvt_pk_bf16_f32 v{dst}, v{src}, v{src}\nv_and_b32 v{dst}, 0xffff0000, v{dst}')
    def rstd(dst, var):
        rbf(dst, var)
        a(f'v_add_f32 v{dst}, {fx(1e-5)}, v{dst}')
        rbf(dst, dst)
        a(f'v_sqrt_f32 v{dst}, v{dst}\ns_nop 0')
        rbf(dst, dst)
        a(f'v_rcp_f32 v{dst}, v{dst}\ns_nop 0')
    MB, R, OF, SG, M2, V2, R2, YA, YB = M+4, M+6, M+8, M+10, M+12, M+13, M+14, M+16, M+18
    rbf(MB, M+2); rstd(R, M+3)
    a(f'''v_mov_b32 v{R+1}, v{R}
    v_mul_f32 v{OF}, v{MB}, v{R}
    v_sub_f32 v{M2}, v{M+2}, v{MB}
    v_mul_f32 v{M2}, v{M2}, v{R}
    v_mul_f32 v{V2}, v{M+3}, v{R}
    v_mul_f32 v{V2}, v{V2}, v{R}
    v_mov_b32 v{YB}, v{OF}
    v_mul_f32 v{OF}, -2.0, v{OF}
    v_mov_b32 v{OF+1}, v{OF}
    v_lshlrev_b32 v10, 9, v4
    v_xor_b32 v6, v3, v4
    v_lshl_add_u32 v6, v6, 4, v10''')
    for t in range(5):
        for k in range(4):
            i = 4*t+k
            a(f'v_pk_add_f32 {vr(D+2*k,2)}, {P(i)}, {P(i+20)}')
            a(f'v_pk_add_f32 {vr(D+8+2*k,2)}, {P(i)}, {P(i+20)} neg_lo:[0,1] neg_hi:[0,1]')
        for k in range(4):
            a(f'v_pk_fma_f32 {vr(D+2*k,2)}, {vr(D+2*k,2)}, {vr(R,2)}, {vr(OF,2)}')
            a(f'v_pk_mul_f32 {vr(D+8+2*k,2)}, {vr(D+8+2*k,2)}, {vr(R,2)}')
        o = D+16+8*(t%2)
        for k in range(8): a(f'v_cvt_pk_bf16_f32 v{o+k}, v{D+2*k}, v{D+2*k+1}')
        a(f'ds_write_b128 v6, {vr(o,4)} offset:{t*4096}')
        a(f'ds_write_b128 v6, {vr(o+4,4)} offset:{20480+t*4096}')
    rbf(M2, M2); rstd(R2, V2)
    a(f'''v_add_f32 v{YB}, v{YB}, v{M2}
    v_mul_f32 v{YA}, v{R}, v{R2}
    v_mul_f32 v{YB}, v{YB}, v{R2}
    v_mov_b32 v{YA+1}, v{YA}
    v_sub_f32 v{YB}, 0, v{YB}
    v_lshl_add_u32 v10, v3, 4, v10
    v_mov_b32 v{YB+1}, v{YB}
    s_mul_i32 s15, s12, 40960
    s_lshl_b32 s28, s13, 13
    s_add_u32 s15, s15, s28
    s_add_u32 s28, s15, 4096''')
    for nt in range(5):
        if nt < 4: a(f's_cmp_lg_u32 s13, {nt}\ns_cbranch_scc1 K1_Y{nt+1}')
        for k in range(8): a(f'v_pk_fma_f32 {vr(D+2*k,2)}, {P(8*nt+k)}, {vr(YA,2)}, {vr(YB,2)}')
        if nt < 4: a(f's_branch K1_YS\nK1_Y{nt+1}:')
    a('K1_YS:')
    for k in range(8): a(f'v_cvt_pk_bf16_f32 v{TM+k}, v{D+2*k}, v{D+2*k+1}')
    a(f'buffer_store_dwordx4 {vr(TM,4)}, v10, s[24:27], s15 offen {ST}')
    a(f'buffer_store_dwordx4 {vr(TM+4,4)}, v10, s[24:27], s28 offen {ST}')
    a.stamp(3)
    a('s_waitcnt lgkmcnt(0)\ns_barrier')
    a.stamp(4)
    for ks in range(20): a(f'ds_read_b128 {vr(XF+4*ks,4)}, v{12+ks%4} offset:{(ks//4)*4096}')
    AC = D
    for ks in range(20):
        a(f's_waitcnt lgkmcnt({min(15,19-ks)})')
        a(f'v_mfma_f32_32x32x16_bf16 {vr(AC,16)}, {vr(XF+4*ks,4)}, {vr(TF+4*ks,4)}, {vr(AC,16) if ks else 0}')
    a('s_nop 7\ns_nop 3')
    a.stamp(5)
    for k in range(8): a(f'v_cvt_pk_bf16_f32 v{D+16+k}, v{AC+2*k}, v{AC+2*k+1}')
    a(f'''buffer_store_dwordx4 {vr(D+16,4)}, v9, s[20:23], 0 offen {ST}
    buffer_store_dwordx4 {vr(D+20,4)}, v9, s[20:23], 0 offen offset:16 {ST}''')
    a.end()
    a('K1_TR:')
    if PF: a('s_cmp_ge_u32 s2, 416\ns_cbranch_scc1 K1_PF')
    a('''s_sub_u32 s12, s2, 320
    s_and_b32 s13, s12, 15
    s_lshr_b32 s12, s12, 4
    s_mul_i32 s12, s12, 54
    v_add_u32 v3, s12, v2
    v_lshlrev_b32 v3, 1, v3
    s_lshl_b32 s14, s13, 4
    s_add_u32 s14, s14, s3
    s_mul_i32 s14, s14, 5136
    s_waitcnt lgkmcnt(0)''')
    a.srd(16, 6, 2048*642); a.srd(20, 8, 2048*642); a.srd(24, 10, WT_SZ, WT_OFF)
    for k in range(8):
        for i in range(4):
            a(f'''s_add_u32 s15, s14, {(32*i+k)*642}
            buffer_load_ushort v{16+4*k+i}, v3, s[16:19], s15 offen
            buffer_load_ushort v{48+4*k+i}, v3, s[20:23], s15 offen''')
    a.stamp(1)
    a('''v_mul_u32_u24 v4, 528, v2
    s_lshl_b32 s15, s3, 7
    v_add_u32 v4, s15, v4
    v_lshrrev_b32 v7, 5, v0
    v_and_b32 v8, 31, v0
    v_mul_u32_u24 v5, 528, v7
    v_lshl_add_u32 v5, v8, 4, v5
    v_add_u32 v7, s12, v7
    v_lshlrev_b32 v6, 13, v7
    v_lshl_add_u32 v6, v8, 4, v6
    s_lshl_b32 s15, s13, 9''')
    for k in range(8):
        a(f's_waitcnt vmcnt({56-8*k})')
        for i in range(4): a(f'v_lshl_or_b32 v{16+4*k+i}, v{48+4*k+i}, 16, v{16+4*k+i}')
        a(f'ds_write_b128 v4, {vr(16+4*k,4)} offset:{k*16}')
    a.stamp(2)
    a('s_waitcnt lgkmcnt(0)\ns_barrier')
    a.stamp(3)
    for r in range(7): a(f'ds_read_b128 {vr(80+4*r,4)}, v5 offset:{r*8*528}')
    for r in range(7):
        a(f's_waitcnt lgkmcnt({6-r})\nbuffer_store_dwordx4 {vr(80+4*r,4)}, v6, s[24:27], s15 offen {ST}')
        if r < 6: a('s_add_u32 s15, s15, 0x10000')
    a.end()
    if PF:
        a('''K1_PF:
        s_load_dwordx2 s[24:25], s[0:1], 32
        s_load_dwordx2 s[26:27], s[0:1], 48
        s_sub_u32 s12, s2, 416
        s_lshl_b32 s12, s12, 2
        s_add_u32 s12, s12, s3
        s_mul_i32 s12, s12, 17408
        v_lshlrev_b32 v3, 4, v2
        s_waitcnt lgkmcnt(0)''')
        a.stamp(1)
        if a.opts.get('cpf') == '1': a.cpf('k2_kernel', 'K3_END', 2, vt=8)
        if a.diag: a('s_waitcnt vmcnt(0)')
        a.stamp(2)
        a.srd(16, 24, 640*3456); a.srd(20, 26, 640*3456)
        for k in range(17):
            a(f'buffer_load_dwordx4 {vr(16+4*k,4)}, v3, s[16:19], s12 offen')
            if PF > 1: a(f'buffer_load_dwordx4 {vr(96+4*k,4)}, v3, s[20:23], s12 offen')
            a('s_add_u32 s12, s12, 1024')
        a('s_waitcnt vmcnt(0)')
        a.end()
    a('K1_END:\ns_endpgm')
    return descriptor('k1_kernel', 240, 240)
```

```python
from common import *
import math
def gen_gemm1(a, ST):
    a(f'''s_and_b32 s12, s2, 7
    s_lshr_b32 s13, s2, 3
    s_and_b32 s14, s13, 1
    s_lshl_b32 s12, s12, 1
    s_add_u32 s12, s12, s14
    s_lshr_b32 s13, s13, 1
    s_and_b32 s14, s3, 1
    s_lshr_b32 s15, s3, 1
    v_lshrrev_b32 v3, 3, v2
    v_and_b32 v4, 7, v2
    v_lshlrev_b32 v5, 1, v3
    v_and_b32 v5, 4, v5
    v_xor_b32 v4, v4, v5
    v_mul_u32_u24 v3, {int(a.opts.get('wpitch', 3456))}, v3
    v_lshl_add_u32 v3, v4, 4, v3
    v_lshlrev_b32 v4, 4, v2
    v_lshrrev_b32 v5, 5, v2
    v_lshlrev_b32 v6, 3, v5
    s_mul_i32 s32, s3, 55296
    s_mul_i32 s33, s13, 384
    s_add_u32 s32, s32, s33
    s_lshl_b32 s34, s12, 2
    s_add_u32 s34, s34, s3
    s_mul_i32 s34, s34, 40960
    s_mul_i32 s35, s14, 192
    s_add_u32 s35, s35, s33
    s_lshl_b32 s36, s3, 11
    s_lshl_b32 s37, s3, 12
    s_add_u32 s37, s37, 24576
    s_waitcnt lgkmcnt(0)''')
    a.srd(16, 4, 640*3456); a.srd(20, 10, YF_SZ, YF_OFF); a.srd(24, 6, 3456); a.srd(28, 10, AF_SZ, AF_OFF)
    BI = 160
    for fb in range(3):
        for g in range(4):
            a(f'buffer_load_dwordx2 {vr(BI+8*fb+2*g,2)}, v6, s[24:27], s35 offen offset:{fb*64+g*16}')
    def dma(st):
        slot = (st % 4)*40960
        out = []
        for fp in range(3):
            for kk in range(2):
                out.append(f'''s_add_u32 m0, s36, {slot+fp*8192+kk*1024}
                s_add_u32 s38, s32, {st*64*3456+kk*8*3456+fp*128}
                buffer_load_dwordx4 v3, s[16:19], s38 offen lds''')
        out.append(f'''s_add_u32 m0, s37, {slot}
        s_add_u32 s38, s34, {st*4096}
        buffer_load_dwordx4 v4, s[20:23], s38 offen lds''')
        for ks in range(1, 4): out.append(f'buffer_load_dwordx4 v4, s[20:23], s38 offen offset:{ks*1024} lds')
        return out
    for st in range(2):
        for x in dma(st): a(x)
    CP = a.cpf('k2_kernel', 'K2_FFT', 1, vt=240)
    a.stamp(1)
    a('''v_bfe_u32 v7, v2, 2, 2
    v_and_b32 v8, 3, v2
    v_bfe_u32 v9, v2, 4, 1
    v_lshlrev_b32 v10, 10, v5
    v_lshl_add_u32 v10, v7, 7, v10
    v_lshl_add_u32 v10, v9, 5, v10
    v_lshl_add_u32 v10, v8, 3, v10
    v_lshrrev_b32 v7, 1, v7
    v_xor_b32 v7, s14, v7
    v_lshl_add_u32 v11, v7, 6, v10
    v_xor_b32 v12, 64, v11
    s_lshl_b32 s39, s14, 13
    s_lshl_b32 s40, s15, 13
    s_add_u32 s40, s40, 24576''')
    WA = 16
    for sl in range(4):
        a(f'''s_add_u32 s41, s39, {sl*40960}
        v_add_u32 v{WA+4*sl}, s41, v11
        s_add_u32 s41, s41, s39
        v_add_u32 v{WA+4*sl+1}, s41, v12
        s_add_u32 s41, s40, {sl*40960}
        v_add_u32 v{WA+4*sl+2}, s41, v4''')
    AC = 32
    FR = 128
    FB = [192, 212]
    acc = lambda fb, tb: AC+32*fb+16*tb
    a(f's_waitcnt vmcnt({20+CP})')
    for fb in range(3):
        for g in range(4):
            for p in range(2):
                src = BI+8*fb+2*g+p
                for tb in range(2):
                    d = acc(fb, tb)+4*g+2*p
                    a(f'v_lshlrev_b32 v{d}, 16, v{src}\nv_and_b32 v{d+1}, 0xffff0000, v{src}')
    def reads(st, ks, buf):
        sl = st % 4; b = FB[buf]; out = []
        for tb in range(2): out.append(f'ds_read_b128 {vr(b+12+4*tb,4)}, v{WA+4*sl+2} offset:{tb*4096+ks*1024}')
        for fb in range(3):
            reg = WA+4*sl+(1 if fb == 1 else 0); off = ks*2048+(8192 if fb == 2 else 0)
            for u in range(2): out.append(f'ds_read_b64_tr_b16 {vr(b+4*fb+2*u,2)}, v{reg} offset:{off+u*512}')
        return out
    def mf(buf):
        b = FB[buf]
        return [f'v_mfma_f32_32x32x16_bf16 {vr(acc(fb,tb),16)}, {vr(b+4*fb,4)}, {vr(b+12+4*tb,4)}, {vr(acc(fb,tb),16)}' for fb in range(3) for tb in range(2)]
    def weave(m, r, f):
        n = len(m); k = 0
        for i, x in enumerate(m):
            a(x)
            for y in r[3*i:3*i+3]: a(y)
            e = (len(f)*(i+1)+n-1)//n
            while k < e: a(f[k]); k += 1
    a(f's_waitcnt vmcnt({10+CP})\ns_barrier')
    a.stamp(2)
    for x in reads(0, 0, 0): a(x)
    buf = 0
    pend = dma(2)+dma(3)
    issued = {0: 10, 1: 10}
    order = [2]*10+[3]*10
    nq = 20
    def take(n):
        out = []
        for _ in range(n):
            if pend: out.append(pend.pop(0))
        return out
    total_issued = [20]
    for st in range(10):
        if st == 4: a.stamp(3)
        for ks in range(4):
            if ks < 3:
                a('s_waitcnt lgkmcnt(0)')
                f = take(5 if st == 0 else 3); total_issued[0] += len(f)
                weave(mf(buf), reads(st, ks+1, buf ^ 1), f)
            else:
                if st < 9:
                    a(f's_waitcnt lgkmcnt(0) vmcnt({total_issued[0]-10*(st+2)+(CP if st == 0 else 0)})\ns_barrier')
                    if st+4 <= 9: pend += dma(st+4)
                    m = mf(buf); r = reads(st+1, 0, buf ^ 1)
                    for x in r[:3]: a(x)
                    f = take(5 if st == 0 else 3); total_issued[0] += len(f)
                    weave(m, r[3:], f)
                else:
                    a('s_waitcnt lgkmcnt(0)')
                    weave(mf(buf), [], [])
            buf ^= 1
    assert not pend
    a.stamp(4)
    c0 = -2*math.log2(math.e)*math.sqrt(2/math.pi); c1 = c0*0.044715
    a(f'''s_mov_b32 s42, {fx(c1)}
    s_mov_b32 s43, s42
    v_mov_b32 v8, {fx(c0)}
    v_mov_b32 v9, {fx(c0)}
    v_bfe_u32 v6, v2, 4, 1
    v_mul_u32_u24 v6, 76800, v6
    v_lshl_add_u32 v6, v5, 9, v6
    v_and_b32 v7, 15, v2
    v_lshl_add_u32 v6, v7, 4, v6
    s_lshl_b32 s38, s12, 1
    s_add_u32 s38, s38, s15
    s_mul_i32 s38, s38, 307200
    s_mul_i32 s39, s13, 6144
    s_mul_i32 s40, s14, 3072
    s_add_u32 s38, s38, s39
    s_add_u32 s38, s38, s40
    s_add_u32 s39, s38, 153600
    s_nop 7''')
    T = 128
    n = 0
    for fb in range(3):
        for tb in range(2):
            x = acc(fb, tb); t = T+16*(n % 2); o = T+32+8*(n % 2); n += 1
            for k in range(8): a(f'v_pk_mul_f32 {vr(t+2*k,2)}, {vr(x+2*k,2)}, {vr(x+2*k,2)}')
            for k in range(8): a(f'v_pk_fma_f32 {vr(t+2*k,2)}, {vr(t+2*k,2)}, s[42:43], v[8:9]')
            for k in range(8): a(f'v_pk_mul_f32 {vr(t+2*k,2)}, {vr(t+2*k,2)}, {vr(x+2*k,2)}')
            for k in range(16): a(f'v_exp_f32 v{t+k}, v{t+k}')
            for k in range(8): a(f'v_pk_add_f32 {vr(t+2*k,2)}, {vr(t+2*k,2)}, 1.0 op_sel_hi:[1,0]')
            for k in range(16): a(f'v_rcp_f32 v{t+k}, v{t+k}')
            for k in range(8): a(f'v_pk_mul_f32 {vr(t+2*k,2)}, {vr(t+2*k,2)}, {vr(x+2*k,2)}')
            for k in range(8): a(f'v_cvt_pk_bf16_f32 v{o+k}, v{t+2*k}, v{t+2*k+1}')
            for tt in range(2):
                a(f'buffer_store_dwordx4 {vr(o+4*tt,4)}, v6, s[28:31], s{38+tb} offen offset:{fb*1024+tt*256} {ST}')
    a.stamp(5)
    a.end()

def gen_fft(a, ST):
    a.cpf('K2_FFT', 'K2_SIDE', 1, vt=250, dst=16)
    a(f'''s_sub_u32 s12, s2, 144
    s_lshl_b32 s13, s12, 2
    s_add_u32 s13, s13, s3
    s_lshl_b32 s14, s13, 13
    s_add_u32 s15, s14, 4096
    s_mov_b32 s33, s15
    s_cmp_eq_u32 s13, 0
    s_cselect_b32 s15, {OOB}, s15
    s_cmp_ge_u32 s13, 320
    s_cselect_b32 s15, {OOB}, s15
    v_and_b32 v3, 31, v2
    v_lshrrev_b32 v4, 5, v2
    v_lshlrev_b32 v5, 6, v3
    v_lshl_add_u32 v5, v4, 5, v5
    v_lshlrev_b32 v6, 4, v2
    s_waitcnt lgkmcnt(0)''')
    a.srd(16, 10, X1T_SZ, X1T_OFF); a.srd(20, 10, WT_SZ, WT_OFF); a.srd(28, 10, AF_SZ, AF_OFF)
    aXr = lambda b, t: ar(8*b+4*t, 4)
    aXi = lambda b, t: ar(16+8*b+4*t, 4)
    aC1, aS1, aN1, aC2, aS2 = 32, 40, 48, 56, 88
    c2 = lambda base, b, bp, t: ar(base+16*b+8*bp+4*t, 4)
    W = 16; ACC = 48; PK = 112; TW = 160
    for b in range(2):
        for t in range(2):
            a(f'buffer_load_dwordx4 {aXr(b,t)}, v5, s[16:19], s14 offen offset:{b*2048+t*16}')
            a(f'buffer_load_dwordx4 {aXi(b,t)}, v5, s[16:19], s15 offen offset:{b*2048+t*16}')
    for b in range(2):
        for g in range(4):
            a(f'buffer_load_dwordx4 {vr(W+16*b+4*g,4)}, v6, s[20:23], s{14 if b==0 else 33} offen offset:{g*1024}')
    a(f'''v_cvt_f32_u32 v7, v3
    v_lshlrev_b32 v8, 2, v4
    v_cvt_f32_u32 v8, v8
    v_and_b32 v15, 1, v2
    v_mul_u32_u24 v15, 0x8000, v15
    v_lshl_or_b32 v15, v15, 16, v15''')
    R = lambda e: 8*(e//4)+e % 4
    def angles(dst, scale, ladd=0.0, extra=None):
        a(f'v_add_f32 v9, {fx(ladd)}, v7\nv_mul_f32 v9, {fx(scale)}, v9\nv_mul_f32 v10, v9, v8')
        if extra: a(f'v_fmamk_f32 v10, v7, {fx(extra)}, v10')
        for e in range(16): a(f'v_fmamk_f32 v{dst+e}, v9, {fx(float(R(e)))}, v10')
    T0, T1, T2 = ACC, ACC+16, ACC+32
    P = PK
    angles(T0, 1/32)
    for e in range(16): a(f'v_cos_f32 v{T1+e}, v{T0+e}\nv_sin_f32 v{T2+e}, v{T0+e}')
    for k in range(8): a(f'v_cvt_pk_bf16_f32 v{P+k}, v{T1+2*k}, v{T1+2*k+1}\nv_cvt_pk_bf16_f32 v{P+8+k}, v{T2+2*k}, v{T2+2*k+1}\nv_cvt_pk_bf16_f32 v{P+16+k}, -v{T2+2*k}, -v{T2+2*k+1}')
    for k in range(24): a(f'v_accvgpr_write_b32 a{aC1+k}, v{P+k}')
    tw = lambda s, e: (TW+32*s+e, TW+32*s+16+e)
    for s_, (ladd, extra) in enumerate([(0.0, None), (0.0, 1/64), (32.0, None)]):
        angles(T0, 1/2048, ladd, extra)
        for e in range(16): a(f'v_cos_f32 v{tw(s_,e)[0]}, v{T0+e}\nv_sin_f32 v{tw(s_,e)[1]}, v{T0+e}')
    angles(T0, 1/64)
    for e in range(16): a(f'v_cos_f32 v{T1+e}, v{T0+e}\nv_sin_f32 v{T2+e}, v{T0+e}')
    for k in range(8): a(f'v_cvt_pk_bf16_f32 v{P+k}, v{T1+2*k}, v{T1+2*k+1}\nv_cvt_pk_bf16_f32 v{P+8+k}, v{T2+2*k}, v{T2+2*k+1}')
    for m, base in enumerate([aC2, aS2]):
        for k in range(8):
            s_ = P+8*m+k
            a(f'''v_xor_b32 v11, v15, v{s_}
            v_xor_b32 v12, 0x80000000, v{s_}
            v_accvgpr_write_b32 a{base+k}, v{s_}
            v_xor_b32 v13, 0x80000000, v11
            v_accvgpr_write_b32 a{base+8+k}, v11
            v_accvgpr_write_b32 a{base+16+k}, v12
            v_accvgpr_write_b32 a{base+24+k}, v13''')
    aR = lambda b: ACC+32*b
    aI = lambda b: ACC+32*b+16
    pk = lambda which, b, t=0: PK+16*which+8*b+4*t
    def mm(d, terms):
        for i, (x, y) in enumerate(terms):
            a(f'v_mfma_f32_32x32x16_bf16 {vr(d,16)}, {x}, {y}, {vr(d,16) if i else 0}')
    def cmul(b, getw, conj, neg):
        for e0 in range(0, 16, 4):
            ws = [getw(e0+j, j) for j in range(4)]
            for j in range(4):
                e = e0+j; c, s_ = ws[j]
                a(f'v_mul_f32 v{8+j}, v{aI(b)+e}, v{s_}\nv_mul_f32 v{12+j}, v{aR(b)+e}, v{s_}')
            for j in range(4):
                e = e0+j; c, s_ = ws[j]
                if conj:
                    a(f'v_fma_f32 v{aR(b)+e}, v{aR(b)+e}, v{c}, v{8+j}\nv_fma_f32 v{aI(b)+e}, v{aI(b)+e}, v{c}, -v{12+j}')
                else:
                    a(f'v_fma_f32 v{aR(b)+e}, v{aR(b)+e}, v{c}, -v{8+j}\nv_fma_f32 v{aI(b)+e}, v{aI(b)+e}, v{c}, v{12+j}')
        for k in range(8):
            r_, i_ = aR(b)+2*k, aI(b)+2*k
            a(f'v_cvt_pk_bf16_f32 v{pk(0,b)+k}, v{r_}, v{r_+1}\nv_cvt_pk_bf16_f32 v{pk(1,b)+k}, v{i_}, v{i_+1}')
            if neg is not None:
                q = r_ if neg == 'r' else i_
                a(f'v_cvt_pk_bf16_f32 v{pk(2,b)+k}, -v{q}, -v{q+1}')
    V4 = lambda r: vr(r, 4)
    a.stamp(1)
    a('s_waitcnt vmcnt(8)')
    a.stamp(2)
    for b in range(2):
        mm(aR(b), [(aXr(b,t), ar(aC1+4*t,4)) for t in range(2)]+[(aXi(b,t), ar(aS1+4*t,4)) for t in range(2)])
        mm(aI(b), [(aXi(b,t), ar(aC1+4*t,4)) for t in range(2)]+[(aXr(b,t), ar(aN1+4*t,4)) for t in range(2)])
    a('s_nop 7')
    for b in range(2):
        if b: a('s_nop 3')
        cmul(b, lambda e, j: tw(b, e), True, 'r')
    a('s_nop 1')
    ST4 = [(bp, t) for bp in range(2) for t in range(2)]
    for b in range(2):
        mm(aR(b), [(c2(aC2,b,bp,t), V4(pk(0,bp,t))) for bp, t in ST4]+[(c2(aS2,b,bp,t), V4(pk(1,bp,t))) for bp, t in ST4])
        mm(aI(b), [(c2(aC2,b,bp,t), V4(pk(1,bp,t))) for bp, t in ST4]+[(c2(aS2,b,bp,t), V4(pk(2,bp,t))) for bp, t in ST4])
    a.stamp(3)
    a('s_waitcnt vmcnt(0)\ns_nop 7\ns_nop 3')
    for b in range(2):
        def gw(e, j):
            w = W+16*b+e; c, s_ = TW+32+j, TW+36+j
            a(f'v_lshlrev_b32 v{c}, 16, v{w}\nv_and_b32 v{s_}, 0xffff0000, v{w}')
            return (c, s_)
        cmul(b, gw, False, 'i')
    a('s_nop 1')
    for b in range(2):
        mm(aR(b), [(V4(pk(0,bp,t)), c2(aC2,b,bp,t)) for bp, t in ST4]+[(V4(pk(2,bp,t)), c2(aS2,b,bp,t)) for bp, t in ST4])
        mm(aI(b), [(V4(pk(1,bp,t)), c2(aC2,b,bp,t)) for bp, t in ST4]+[(V4(pk(0,bp,t)), c2(aS2,b,bp,t)) for bp, t in ST4])
    a('s_nop 7\ns_nop 3')
    for b in range(2): cmul(b, lambda e, j: tw(2*b, e), False, None)
    a('s_nop 1')
    for b in range(2):
        mm(aR(b), [(ar(aC1+4*t,4), V4(pk(0,b,t))) for t in range(2)]+[(ar(aN1+4*t,4), V4(pk(1,b,t))) for t in range(2)])
        mm(aI(b), [(ar(aC1+4*t,4), V4(pk(1,b,t))) for t in range(2)]+[(ar(aS1+4*t,4), V4(pk(0,b,t))) for t in range(2)])
    a.stamp(4)
    a('''v_mul_u32_u24 v5, 4160, v4
    v_lshl_add_u32 v5, v3, 4, v5
    s_lshl_b32 s14, s3, 2
    v_add_u32 v5, s14, v5
    v_and_b32 v6, 31, v0
    v_mul_u32_u24 v6, 1040, v6
    v_lshrrev_b32 v7, 5, v0
    v_lshl_add_u32 v6, v7, 4, v6
    v_lshrrev_b32 v7, 4, v0
    v_mul_u32_u24 v7, 76800, v7
    v_and_b32 v8, 15, v0
    v_lshl_add_u32 v7, v8, 4, v7
    s_lshl_b32 s14, s12, 8
    s_add_u32 s14, s14, 55296''')
    for b in range(2):
        if b: a('s_nop 7')
        for e in range(16):
            a(f'v_cvt_pk_bf16_f32 v{PK+16*b+e}, v{aR(b)+e}, v{aI(b)+e}')
        for e in range(16):
            a(f'ds_write_b32 v5, v{PK+16*b+e} offset:{(R(e)*65+32*b)*16}')
    a('s_waitcnt lgkmcnt(0)\ns_barrier')
    a.stamp(5)
    for r in range(8): a(f'ds_read_b128 {vr(16+4*r,4)}, v6 offset:{r*128}')
    a('s_mov_b32 s15, s14')
    for r in range(8):
        a(f's_waitcnt lgkmcnt({7-r})\nbuffer_store_dwordx4 {vr(16+4*r,4)}, v7, s[28:31], s15 offen {ST}\ns_add_u32 s15, s15, {16*76800}')
    a('s_cmp_lg_u32 s12, 80\ns_cbranch_scc1 K2_FEND')
    for k in range(4): a(f'v_mov_b32 v{60+k}, 0')
    for r in range(8):
        for q in range(1, 4): a(f'buffer_store_dwordx4 v[60:63], v7, s[28:31], s14 offen offset:{q*256} {ST}')
        a(f's_add_u32 s14, s14, {16*76800}')
    a('K2_FEND:')
    a.end()

def gen_side(a, ST):
    a.cpf('K2_SIDE', 'K2_END', 1, vt=250)
    a('''s_sub_u32 s12, s2, 225
    s_mul_i32 s13, s12, 81920
    s_mul_i32 s14, s3, 20480
    s_add_u32 s13, s13, s14
    v_lshlrev_b32 v3, 4, v2
    s_waitcnt lgkmcnt(0)''')
    a.srd(16, 8, 1728*1280); a.srd(20, 10, BF_SZ, BF_OFF)
    for p in range(5):
        a(f's_add_u32 m0, s14, {p*4096}\ns_add_u32 s15, s13, {p*4096}')
        for k in range(4): a(f'buffer_load_dwordx4 v3, s[16:19], s15 offen offset:{k*1024} lds')
    sc = 1.0/(320*2048)
    a(f'''s_lshl_b32 s24, s12, 2
    s_add_u32 s24, s24, s3
    s_cmp_ge_u32 s24, 105
    s_cbranch_scc1 K2_S_NOTG
    s_mul_i32 s25, s24, 52429
    s_lshr_b32 s25, s25, 18
    s_mul_i32 s26, s25, 5
    s_sub_u32 s26, s24, s26
    v_and_b32 v4, 15, v2
    v_lshrrev_b32 v5, 4, v2
    v_lshrrev_b32 v6, 2, v4
    v_mul_u32_u24 v6, 20, v6
    v_and_b32 v4, 3, v4
    v_add_u32 v4, v4, v6
    s_lshl_b32 s27, s26, 2
    v_add_u32 v4, s27, v4
    v_cvt_f32_u32 v4, v4
    s_lshl_b32 s27, s25, 4
    v_lshl_add_u32 v5, v5, 2, s27
    v_mov_b32 v7, {fx(sc)}
    v_mov_b32 v8, {fx(sc/2)}
    v_mov_b32 v9, {fx(-sc)}
    s_mul_i32 s27, s26, 76800
    s_add_u32 s25, s25, 54
    s_lshl_b32 s25, s25, 10
    s_add_u32 s27, s27, s25''')
    for cc in range(4):
        a(f'''v_add_u32 v6, {cc}, v5
        v_cvt_f32_u32 v{16+cc}, v6
        v_cmp_eq_u32 vcc, 0, v6
        v_cmp_le_u32 s[28:29], v10, v6
        v_cmp_lt_u32 s[30:31], v10, v6
        s_or_b64 s[28:29], s[28:29], vcc
        s_nop 1
        v_cndmask_b32 v{20+cc}, v7, v8, s[28:29]
        v_cndmask_b32 v{24+cc}, v9, 0, s[28:29]
        v_cndmask_b32 v{20+cc}, v{20+cc}, 0, s[30:31]'''.replace('v_add_u32 v6', 'v_mov_b32 v10, 320\nv_add_u32 v6'))
    for nt in range(8):
        a(f'v_add_f32 v11, {fx(80.0*nt)}, v4')
        for cc in range(4): a(f'v_mul_f32 v{28+cc}, v11, v{16+cc}')
        for cc in range(4): a(f'v_mul_f32 v{28+cc}, {fx(1/640)}, v{28+cc}')
        for cc in range(4): a(f'v_fract_f32 v{28+cc}, v{28+cc}')
        for cc in range(4): a(f'v_cos_f32 v{32+cc}, v{28+cc}\nv_sin_f32 v{36+cc}, v{28+cc}')
        for cc in range(4): a(f'v_mul_f32 v{32+cc}, v{32+cc}, v{20+cc}\nv_mul_f32 v{36+cc}, v{36+cc}, v{24+cc}')
        o = 40+4*nt
        for cc in range(4): a(f'v_cvt_pk_bf16_f32 v{o+cc}, v{32+cc}, v{36+cc}')
        a(f'buffer_store_dwordx4 {vr(o,4)}, v3, s[20:23], s27 offen {ST}\ns_add_u32 s27, s27, {5*76800}')
    a('''K2_S_NOTG:
    v_bfe_u32 v4, v2, 4, 1
    v_lshrrev_b32 v5, 5, v2
    v_bfe_u32 v6, v2, 2, 2
    v_and_b32 v7, 3, v2
    v_lshl_add_u32 v6, v5, 2, v6
    v_lshl_add_u32 v6, v4, 4, v6
    v_mul_u32_u24 v6, 1280, v6
    v_mul_u32_u24 v7, 40, v7
    s_mul_i32 s14, s3, 320
    v_add3_u32 v6, v6, v7, s14
    v_add_u32 v7, 40960, v6
    s_mul_i32 s15, s3, 768000
    s_lshl_b32 s13, s12, 11
    s_add_u32 s15, s15, s13
    s_waitcnt vmcnt(0)
    s_barrier''')
    a.stamp(2)
    for ks in range(2):
        for nb in range(10):
            o = 80+40*ks+4*nb
            off = (nb//5)*160+(nb % 5)*8
            for u in range(2): a(f'ds_read_b64_tr_b16 {vr(o+2*u,2)}, v{6+ks} offset:{off+u*10240}')
        a('s_waitcnt lgkmcnt(0)')
        for nb in range(10):
            o = 80+40*ks+4*nb
            a(f's_add_u32 s13, s15, {nb*76800+ks*1024}\nbuffer_store_dwordx4 {vr(o,4)}, v3, s[20:23], s13 offen {ST}')
    a.end()

def gen_k2(a, ST=''):
    header(a, 'k2_kernel')
    a(f'''s_cmp_ge_u32 s2, {a.opts.get('k2n', 252)}
    s_cbranch_scc1 K2_END
    s_load_dwordx4 s[4:7], s[0:1], 32
    s_load_dwordx2 s[8:9], s[0:1], 48
    s_load_dwordx2 s[10:11], s[0:1], 80
    v_lshrrev_b32 v1, 6, v0
    v_and_b32 v2, 63, v0
    v_readfirstlane_b32 s3, v1
    s_cmp_ge_u32 s2, 225
    s_cbranch_scc1 K2_SIDE
    s_cmp_ge_u32 s2, 144
    s_cbranch_scc1 K2_FFT''')
    gen_gemm1(a, ST)
    a('K2_FFT:'); gen_fft(a, ST)
    a('K2_SIDE:'); gen_side(a, ST)
    a('K2_END:\ns_endpgm')
    return descriptor('k2_kernel', 256+120, 256)
```

```python
from common import *
def gen_k1(a, ST=''):
    header(a, 'k1_kernel')
    PF = int(a.opts.get('pf', 0))
    a(f'''s_cmp_ge_u32 s2, {384 if PF else 352}
    s_cbranch_scc1 K1_END
    s_load_dwordx4 s[4:7], s[0:1], 0
    s_load_dwordx2 s[8:9], s[0:1], 16
    s_load_dwordx2 s[10:11], s[0:1], 80
    v_lshrrev_b32 v1, 6, v0
    v_and_b32 v2, 63, v0
    v_readfirstlane_b32 s3, v1''')
    a.cpf('k1_kernel', 'K1_END', 1, vt=232, dst=20)
    a('''s_cmp_ge_u32 s2, 256
    s_cbranch_scc1 K1_TR''')
    a('''s_and_b32 s12, s2, 7
    s_lshl_b32 s12, s12, 3
    s_lshr_b32 s13, s2, 3
    s_and_b32 s15, s13, 7
    s_add_u32 s12, s12, s15
    s_lshr_b32 s13, s13, 3
    v_lshrrev_b32 v3, 3, v0
    v_and_b32 v4, 7, v0
    v_lshlrev_b32 v5, 6, v3
    v_add_u32 v5, s12, v5
    v_mul_u32_u24 v5, 1280, v5
    v_lshl_add_u32 v5, v4, 4, v5
    s_waitcnt lgkmcnt(0)''')
    a.srd(16, 4, 2048*1280)
    a.srd(20, 10, X1T_SZ, X1T_OFF)
    a.srd(24, 10, YF_SZ, YF_OFF)
    XF = 16
    TF = 96
    TM = 176
    D = 208
    for t in range(10):
        a(f'buffer_load_dwordx4 {vr(XF+8*t+4,4)}, v5, s[16:19], 0 offen offset:{t*128}')
    a('''s_lshr_b32 s14, s13, 1
    s_and_b32 s31, s13, 1
    s_mul_i32 s31, s31, 5
    v_lshrrev_b32 v11, 5, v2''')
    rb = [TM, TM+8, TM+16]
    TX = lambda t: 240+4*t if t < 4 else 204
    for ex in range(2):
        so = 9 if ex == 0 else 1
        a(f'''s_add_u32 s15, s31, {'4' if ex else 's3'}
        s_lshl_b32 s15, s15, 5
        v_and_b32 v6, 31, v2
        v_add_u32 v6, s15, v6
        v_and_b32 v7, 1, v6
        v_and_b32 v8, 0xfffffffe, v6
        v_add_u32 v8, s14, v8
        v_lshl_add_u32 v{so}, v8, 1, v7
        v_cmp_eq_u32 vcc, 1, v{so}
        v_mov_b32 v10, 320
        s_lshl_b32 s15, s12, 6
        v_cndmask_b32 v8, v8, v10, vcc
        v_cndmask_b32 v7, v7, 0, vcc
        v_lshl_add_u32 v{so}, v8, 1, v7
        v_lshlrev_b32 v{so}, 12, v{so}
        v_lshl_add_u32 v{so}, v11, 5, v{so}
        v_add_u32 v{so}, s15, v{so}
        v_cvt_f32_u32 v8, v8
        v_cvt_f32_u32 v7, v7
        v_lshlrev_b32 v10, 3, v11''')
        if ex: a('s_mul_i32 s15, s3, 80\nv_add_u32 v10, s15, v10\ns_lshl_b32 s15, s3, 3\nv_add_u32 v1, s15, v1')
        a(f'''v_cvt_f32_u32 v10, v10
        v_mul_f32 v8, {fx(1/640)}, v8
        v_mul_f32 v7, {fx(0.25)}, v7
        v_fmac_f32 v7, v10, v8''')
        a(f'v_mul_f32 v{D}, {fx(16.0)}, v8')
        for t in range(2):
            for j in range(8): a(f'v_fmamk_f32 v{rb[t]+j}, v8, {fx(float(16*t+j))}, v7')
        a(f'v_cos_f32 v{D}, v{D}')
        for t in range(2):
            for j in range(8): a(f'v_cos_f32 v{rb[t]+j}, v{rb[t]+j}')
        a(f'v_add_f32 v{D}, v{D}, v{D}')
        for t in range(5 if ex else 20):
            if t >= 2:
                for j in range(8): a(f'v_fma_f32 v{rb[t%3]+j}, v{D}, v{rb[(t-1)%3]+j}, -v{rb[(t-2)%3]+j}')
            for j in range(4): a(f'v_cvt_pk_bf16_f32 v{(TX(t) if ex else TF+4*t)+j}, v{rb[t%3]+2*j}, v{rb[t%3]+2*j+1}')
    a.stamp(1)
    a('v_and_b32 v6, 31, v2')
    for e in range(4):
        a(f'''v_add_u32 v10, {2*e}, v11
        v_xor_b32 v10, v10, v6
        v_lshlrev_b32 v10, 4, v10
        v_lshl_add_u32 v10, v11, 9, v10
        v_add_u32 v{12+e}, {e*1024}, v10''')
    for t in range(10):
        a(f's_waitcnt vmcnt({9-t})')
        for k in range(4):
            src = XF+8*t+4+k
            a(f'v_lshlrev_b32 v{XF+8*t+2*k}, 16, v{src}\nv_and_b32 v{XF+8*t+2*k+1}, 0xffff0000, v{src}')
    a.stamp(2)
    P = lambda i: vr(XF+2*i, 2)
    for k in range(4): a(f'v_pk_add_f32 {vr(TM+2*k,2)}, {P(k)}, {P(k+4)}')
    for i in range(8, 40): a(f'v_pk_add_f32 {vr(TM+2*(i%4),2)}, {vr(TM+2*(i%4),2)}, {P(i)}')
    def red(dst):
        a(f'''v_pk_add_f32 {vr(TM,2)}, {vr(TM,2)}, {vr(TM+2,2)}
        v_pk_add_f32 {vr(TM+4,2)}, {vr(TM+4,2)}, {vr(TM+6,2)}
        s_nop 0
        v_pk_add_f32 {vr(TM,2)}, {vr(TM,2)}, {vr(TM+4,2)}
        s_nop 0
        v_add_f32 v{TM}, v{TM}, v{TM+1}
        s_nop 1
        v_add_f32_dpp v{TM+1}, v{TM}, v{TM} quad_perm:[1,0,3,2] row_mask:0xf bank_mask:0xf
        s_nop 1
        v_add_f32_dpp v{TM}, v{TM+1}, v{TM+1} quad_perm:[2,3,0,1] row_mask:0xf bank_mask:0xf
        s_nop 1
        v_add_f32_dpp v{TM+1}, v{TM}, v{TM} row_half_mirror row_mask:0xf bank_mask:0xf
        v_mul_f32 v{dst}, {fx(1/640)}, v{TM+1}''')
    M = TM+8
    red(M+2)
    a(f'v_sub_f32 v{M}, 0, v{M+2}\nv_sub_f32 v{M+1}, 0, v{M+2}')
    for i in range(40):
        d = vr(D+2*(i % 8), 2)
        a(f'v_pk_add_f32 {d}, {P(i)}, {vr(M,2)}')
        if i >= 4:
            k = i-4; dk = vr(D+2*(k % 8), 2); acc = vr(TM+2*(k % 4), 2)
            a(f'v_pk_mul_f32 {acc}, {dk}, {dk}' if k < 4 else f'v_pk_fma_f32 {acc}, {dk}, {dk}, {acc}')
    for k in range(36, 40):
        dk = vr(D+2*(k % 8), 2); acc = vr(TM+2*(k % 4), 2)
        a(f'v_pk_fma_f32 {acc}, {dk}, {dk}, {acc}')
    red(M+3)
    def rbf(dst, src):
        a(f'v_cvt_pk_bf16_f32 v{dst}, v{src}, v{src}\nv_and_b32 v{dst}, 0xffff0000, v{dst}')
    def rstd(dst, var):
        rbf(dst, var)
        a(f'v_add_f32 v{dst}, {fx(1e-5)}, v{dst}')
        rbf(dst, dst)
        a(f'v_sqrt_f32 v{dst}, v{dst}\ns_nop 0')
        rbf(dst, dst)
        a(f'v_rcp_f32 v{dst}, v{dst}\ns_nop 0')
    MB, R, OF, SG, M2, V2, R2, YA, YB = M+4, M+6, M+8, M+10, M+12, M+13, M+14, M+16, M+18
    rbf(MB, M+2); rstd(R, M+3)
    a(f'''v_mov_b32 v{R+1}, v{R}
    v_mul_f32 v{OF}, v{MB}, v{R}
    v_sub_f32 v{M2}, v{M+2}, v{MB}
    v_mul_f32 v{M2}, v{M2}, v{R}
    v_mul_f32 v{V2}, v{M+3}, v{R}
    v_mul_f32 v{V2}, v{V2}, v{R}
    v_mov_b32 v{YB}, v{OF}
    s_cmp_eq_u32 s14, 0
    s_cselect_b32 s28, -2.0, 0
    s_cselect_b32 s30, 1.0, -1.0
    s_mov_b32 s31, s30
    v_mul_f32 v{OF}, s28, v{OF}
    v_mov_b32 v{OF+1}, v{OF}
    v_lshlrev_b32 v10, 9, v4
    v_xor_b32 v6, v3, v4
    v_lshl_add_u32 v6, v6, 4, v10''')
    for t in range(5):
        b = D+16*(t % 2)
        for k in range(4): a(f'v_pk_fma_f32 {vr(b+2*k,2)}, {P(4*t+k+20)}, s[30:31], {P(4*t+k)}')
        for k in range(4): a(f'v_pk_fma_f32 {vr(b+2*k,2)}, {vr(b+2*k,2)}, {vr(R,2)}, {vr(OF,2)}')
        for k in range(4): a(f'v_cvt_pk_bf16_f32 v{b+8+k}, v{b+2*k}, v{b+2*k+1}')
        a(f'ds_write_b128 v6, {vr(b+8,4)} offset:{t*4096}')
    rbf(M2, M2); rstd(R2, V2)
    a(f'''v_add_f32 v{YB}, v{YB}, v{M2}
    v_mul_f32 v{YA}, v{R}, v{R2}
    v_mul_f32 v{YB}, v{YB}, v{R2}
    v_mov_b32 v{YA+1}, v{YA}
    v_sub_f32 v{YB}, 0, v{YB}
    v_lshl_add_u32 v10, v3, 4, v10
    v_mov_b32 v{YB+1}, v{YB}
    s_mul_i32 s15, s12, 40960''')
    for nt, ch in enumerate([(0, 1, 2), (3, 4, 5), (6, 7), (8, 9)]):
        if nt < 3: a(f's_cmp_lg_u32 s13, {nt}\ns_cbranch_scc1 K1_Y{nt+1}')
        for n, t in enumerate(ch):
            for k in range(4): a(f'v_pk_fma_f32 {vr(D+8*n+2*k,2)}, {P(4*t+k)}, {vr(YA,2)}, {vr(YB,2)}')
        a(f's_add_u32 s15, s15, {ch[0]*4096}')
        for n, t in enumerate(ch):
            for k in range(4): a(f'v_cvt_pk_bf16_f32 v{D+8*n+k}, v{D+8*n+2*k}, v{D+8*n+2*k+1}')
            a(f'buffer_store_dwordx4 {vr(D+8*n,4)}, v10, s[24:27], s15 offen {ST}')
            if n < len(ch)-1: a('s_add_u32 s15, s15, 4096')
        if nt < 3: a(f's_branch K1_YS\nK1_Y{nt+1}:')
    a('K1_YS:')
    a('v_and_b32 v6, 31, v2\ns_mul_i32 s28, s3, 5')
    for j in range(5):
        a(f'''s_and_b32 s29, s28, 3
        s_lshl_b32 s30, s29, 1
        v_add_u32 v7, s30, v11
        v_xor_b32 v7, v7, v6
        v_lshlrev_b32 v7, 4, v7
        v_lshl_add_u32 v7, v11, 9, v7
        s_lshl_b32 s30, s28, 10
        v_add_u32 v{TM+j}, s30, v7
        s_add_u32 s28, s28, 1''')
    a(f'''v_lshlrev_b32 v7, 4, v2
    s_lshl_b32 s28, s3, 10
    s_add_u32 s28, s28, 20480
    v_add_u32 v{TM+5}, s28, v7
    s_lshl_b32 s28, s3, 12
    s_add_u32 s28, s28, 20480
    v_add_u32 v{TM+6}, s28, v7''')
    a.stamp(3)
    a('s_waitcnt lgkmcnt(0)\ns_barrier')
    a.stamp(4)
    XE = TM+8; AC = D; AE = D+16
    for j in range(5): a(f'ds_read_b128 {vr(XE+4*j,4)}, v{TM+j}')
    for ks in range(20): a(f'ds_read_b128 {vr(XF+4*ks,4)}, v{12+ks%4} offset:{(ks//4)*4096}')
    a('s_waitcnt lgkmcnt(15)')
    for ks in range(20):
        if ks >= 5: a(f's_waitcnt lgkmcnt({19-ks+max(0, min(ks-9, 4))})')
        if ks < 5: a(f'v_mfma_f32_32x32x16_bf16 {vr(AE,16)}, {vr(XE+4*ks,4)}, {vr(TX(ks),4)}, {vr(AE,16) if ks else 0}')
        a(f'v_mfma_f32_32x32x16_bf16 {vr(AC,16)}, {vr(XF+4*ks,4)}, {vr(TF+4*ks,4)}, {vr(AC,16) if ks else 0}')
        if 9 <= ks < 13: a(f'ds_write_b128 v{TM+5}, {vr(AE+4*(ks-9),4)} offset:{(ks-9)*4096}')
    a('s_waitcnt lgkmcnt(0)\ns_barrier')
    for k in range(4): a(f'ds_read_b128 {vr(XE+4*k,4)}, v{TM+6} offset:{k*1024}')
    a('s_nop 7')
    a.stamp(5)
    for k in range(8): a(f'v_cvt_pk_bf16_f32 v{XF+k}, v{AC+2*k}, v{AC+2*k+1}')
    a(f'''buffer_store_dwordx4 {vr(XF,4)}, v9, s[20:23], 0 offen {ST}
    buffer_store_dwordx4 {vr(XF+4,4)}, v9, s[20:23], 0 offen offset:16 {ST}
    s_waitcnt lgkmcnt(0)''')
    for k in range(2): a(f'v_pk_add_f32 {vr(XE+2*k,2)}, {vr(XE+2*k,2)}, {vr(XE+4+2*k,2)}\nv_pk_add_f32 {vr(XE+8+2*k,2)}, {vr(XE+8+2*k,2)}, {vr(XE+12+2*k,2)}')
    for k in range(2): a(f'v_pk_add_f32 {vr(XE+2*k,2)}, {vr(XE+2*k,2)}, {vr(XE+8+2*k,2)}')
    a(f'''s_nop 0
    v_cvt_pk_bf16_f32 v{XE+4}, v{XE}, v{XE+1}
    v_cvt_pk_bf16_f32 v{XE+5}, v{XE+2}, v{XE+3}
    buffer_store_dwordx2 {vr(XE+4,2)}, v1, s[20:23], 0 offen {ST}''')
    a.end()
    a('K1_TR:')
    if PF: a('s_cmp_ge_u32 s2, 352\ns_cbranch_scc1 K1_PF')
    a('''s_sub_u32 s12, s2, 256
    s_and_b32 s13, s12, 15
    s_lshr_b32 s12, s12, 4
    s_mul_i32 s12, s12, 54
    v_add_u32 v3, s12, v2
    v_lshlrev_b32 v3, 1, v3
    s_lshl_b32 s14, s13, 4
    s_add_u32 s14, s14, s3
    s_mul_i32 s14, s14, 5136
    s_waitcnt lgkmcnt(0)''')
    a.srd(16, 6, 2048*642); a.srd(20, 8, 2048*642); a.srd(24, 10, WT_SZ, WT_OFF)
    for k in range(8):
        for i in range(4):
            a(f'''s_add_u32 s15, s14, {(32*i+k)*642}
            buffer_load_ushort v{16+4*k+i}, v3, s[16:19], s15 offen
            buffer_load_ushort v{48+4*k+i}, v3, s[20:23], s15 offen''')
    a.stamp(1)
    a('''v_mul_u32_u24 v4, 528, v2
    s_lshl_b32 s15, s3, 7
    v_add_u32 v4, s15, v4
    v_lshrrev_b32 v7, 5, v0
    v_and_b32 v8, 31, v0
    v_mul_u32_u24 v5, 528, v7
    v_lshl_add_u32 v5, v8, 4, v5
    v_add_u32 v7, s12, v7
    v_lshlrev_b32 v6, 13, v7
    v_lshl_add_u32 v6, v8, 4, v6
    s_lshl_b32 s15, s13, 9''')
    for k in range(8):
        a(f's_waitcnt vmcnt({56-8*k})')
        for i in range(4): a(f'v_lshl_or_b32 v{16+4*k+i}, v{48+4*k+i}, 16, v{16+4*k+i}')
        a(f'ds_write_b128 v4, {vr(16+4*k,4)} offset:{k*16}')
    a.stamp(2)
    a('s_waitcnt lgkmcnt(0)\ns_barrier')
    a.stamp(3)
    for r in range(7): a(f'ds_read_b128 {vr(80+4*r,4)}, v5 offset:{r*8*528}')
    for r in range(7):
        a(f's_waitcnt lgkmcnt({6-r})\nbuffer_store_dwordx4 {vr(80+4*r,4)}, v6, s[24:27], s15 offen {ST}')
        if r < 6: a('s_add_u32 s15, s15, 0x10000')
    a.end()
    if PF:
        a('''K1_PF:
        s_load_dwordx2 s[24:25], s[0:1], 32
        s_load_dwordx2 s[26:27], s[0:1], 48
        s_sub_u32 s12, s2, 352
        s_lshl_b32 s12, s12, 2
        s_add_u32 s12, s12, s3
        s_mul_i32 s12, s12, 17408
        v_lshlrev_b32 v3, 4, v2
        s_waitcnt lgkmcnt(0)''')
        a.stamp(1)
        if a.opts.get('cpf') == '1': a.cpf('k2_kernel', 'K3_END', 2, vt=8)
        if a.diag: a('s_waitcnt vmcnt(0)')
        a.stamp(2)
        a.srd(16, 24, 640*3456); a.srd(20, 26, 640*3456)
        for k in range(17):
            a(f'buffer_load_dwordx4 {vr(16+4*k,4)}, v3, s[16:19], s12 offen')
            if PF > 1: a(f'buffer_load_dwordx4 {vr(96+4*k,4)}, v3, s[20:23], s12 offen')
            a('s_add_u32 s12, s12, 1024')
        a('s_waitcnt vmcnt(0)')
        a.end()
    a('K1_END:\ns_endpgm')
    return descriptor('k1_kernel', 256, 256)
```

```python
from common import *
import math
def gen_gemm1(a, ST):
    a(f'''s_and_b32 s12, s2, 7
    s_lshr_b32 s13, s2, 3
    s_and_b32 s14, s13, 1
    s_lshl_b32 s12, s12, 1
    s_add_u32 s12, s12, s14
    s_lshr_b32 s13, s13, 1
    s_and_b32 s14, s3, 1
    s_lshr_b32 s15, s3, 1
    v_lshrrev_b32 v3, 3, v2
    v_and_b32 v4, 7, v2
    v_lshlrev_b32 v5, 1, v3
    v_and_b32 v5, 4, v5
    v_xor_b32 v4, v4, v5
    v_mul_u32_u24 v3, {int(a.opts.get('wpitch', 3456))}, v3
    v_lshl_add_u32 v3, v4, 4, v3
    v_lshlrev_b32 v4, 4, v2
    v_lshrrev_b32 v5, 5, v2
    v_lshlrev_b32 v6, 3, v5
    s_mul_i32 s32, s3, 55296
    s_mul_i32 s33, s13, 384
    s_add_u32 s32, s32, s33
    s_lshl_b32 s34, s12, 2
    s_add_u32 s34, s34, s3
    s_mul_i32 s34, s34, 40960
    s_mul_i32 s35, s14, 192
    s_add_u32 s35, s35, s33
    s_lshl_b32 s36, s3, 11
    s_lshl_b32 s37, s3, 12
    s_add_u32 s37, s37, 24576
    s_waitcnt lgkmcnt(0)''')
    a.srd(16, 4, 640*3456); a.srd(20, 10, YF_SZ, YF_OFF); a.srd(24, 6, 3456); a.srd(28, 10, AF_SZ, AF_OFF)
    BI = 160
    for fb in range(3):
        for g in range(4):
            a(f'buffer_load_dwordx2 {vr(BI+8*fb+2*g,2)}, v6, s[24:27], s35 offen offset:{fb*64+g*16}')
    def dma(st):
        slot = (st % 4)*40960
        out = []
        for fp in range(3):
            for kk in range(2):
                out.append(f'''s_add_u32 m0, s36, {slot+fp*8192+kk*1024}
                s_add_u32 s38, s32, {st*64*3456+kk*8*3456+fp*128}
                buffer_load_dwordx4 v3, s[16:19], s38 offen lds''')
        out.append(f'''s_add_u32 m0, s37, {slot}
        s_add_u32 s38, s34, {st*4096}
        buffer_load_dwordx4 v4, s[20:23], s38 offen lds''')
        for ks in range(1, 4): out.append(f'buffer_load_dwordx4 v4, s[20:23], s38 offen offset:{ks*1024} lds')
        return out
    for st in range(2):
        for x in dma(st): a(x)
    CP = a.cpf('k2_kernel', 'K2_FFT', 1, vt=240)
    a.stamp(1)
    a('''v_bfe_u32 v7, v2, 2, 2
    v_and_b32 v8, 3, v2
    v_bfe_u32 v9, v2, 4, 1
    v_lshlrev_b32 v10, 10, v5
    v_lshl_add_u32 v10, v7, 7, v10
    v_lshl_add_u32 v10, v9, 5, v10
    v_lshl_add_u32 v10, v8, 3, v10
    v_lshrrev_b32 v7, 1, v7
    v_xor_b32 v7, s14, v7
    v_lshl_add_u32 v11, v7, 6, v10
    v_xor_b32 v12, 64, v11
    s_lshl_b32 s39, s14, 13
    s_lshl_b32 s40, s15, 13
    s_add_u32 s40, s40, 24576''')
    WA = 16
    for sl in range(4):
        a(f'''s_add_u32 s41, s39, {sl*40960}
        v_add_u32 v{WA+4*sl}, s41, v11
        s_add_u32 s41, s41, s39
        v_add_u32 v{WA+4*sl+1}, s41, v12
        s_add_u32 s41, s40, {sl*40960}
        v_add_u32 v{WA+4*sl+2}, s41, v4''')
    AC = 32
    FR = 128
    FB = [192, 212]
    acc = lambda fb, tb: AC+32*fb+16*tb
    a(f's_waitcnt vmcnt({20+CP})')
    for fb in range(3):
        for g in range(4):
            for p in range(2):
                src = BI+8*fb+2*g+p
                for tb in range(2):
                    d = acc(fb, tb)+4*g+2*p
                    a(f'v_lshlrev_b32 v{d}, 16, v{src}\nv_and_b32 v{d+1}, 0xffff0000, v{src}')
    def reads(st, ks, buf):
        sl = st % 4; b = FB[buf]; out = []
        for tb in range(2): out.append(f'ds_read_b128 {vr(b+12+4*tb,4)}, v{WA+4*sl+2} offset:{tb*4096+ks*1024}')
        for fb in range(3):
            reg = WA+4*sl+(1 if fb == 1 else 0); off = ks*2048+(8192 if fb == 2 else 0)
            for u in range(2): out.append(f'ds_read_b64_tr_b16 {vr(b+4*fb+2*u,2)}, v{reg} offset:{off+u*512}')
        return out
    def mf(buf):
        b = FB[buf]
        return [f'v_mfma_f32_32x32x16_bf16 {vr(acc(fb,tb),16)}, {vr(b+4*fb,4)}, {vr(b+12+4*tb,4)}, {vr(acc(fb,tb),16)}' for fb in range(3) for tb in range(2)]
    def weave(m, r, f):
        n = len(m); k = 0
        for i, x in enumerate(m):
            a(x)
            for y in r[3*i:3*i+3]: a(y)
            e = (len(f)*(i+1)+n-1)//n
            while k < e: a(f[k]); k += 1
    a(f's_waitcnt vmcnt({10+CP})\ns_barrier')
    a.stamp(2)
    for x in reads(0, 0, 0): a(x)
    buf = 0
    pend = dma(2)+dma(3)
    issued = {0: 10, 1: 10}
    order = [2]*10+[3]*10
    nq = 20
    def take(n):
        out = []
        for _ in range(n):
            if pend: out.append(pend.pop(0))
        return out
    total_issued = [20]
    for st in range(10):
        if st == 4: a.stamp(3)
        for ks in range(4):
            if ks < 3:
                a('s_waitcnt lgkmcnt(0)')
                f = take(5 if st == 0 else 3); total_issued[0] += len(f)
                weave(mf(buf), reads(st, ks+1, buf ^ 1), f)
            else:
                if st < 9:
                    a(f's_waitcnt lgkmcnt(0) vmcnt({total_issued[0]-10*(st+2)+(CP if st == 0 else 0)})\ns_barrier')
                    if st+4 <= 9: pend += dma(st+4)
                    m = mf(buf); r = reads(st+1, 0, buf ^ 1)
                    for x in r[:3]: a(x)
                    f = take(5 if st == 0 else 3); total_issued[0] += len(f)
                    weave(m, r[3:], f)
                else:
                    a('s_waitcnt lgkmcnt(0)')
                    weave(mf(buf), [], [])
            buf ^= 1
    assert not pend
    a.stamp(4)
    c0 = -2*math.log2(math.e)*math.sqrt(2/math.pi); c1 = c0*0.044715
    a(f'''s_mov_b32 s42, {fx(c1)}
    s_mov_b32 s43, s42
    v_mov_b32 v8, {fx(c0)}
    v_mov_b32 v9, {fx(c0)}
    v_bfe_u32 v6, v2, 4, 1
    v_mul_u32_u24 v6, 76800, v6
    v_lshl_add_u32 v6, v5, 9, v6
    v_and_b32 v7, 15, v2
    v_lshl_add_u32 v6, v7, 4, v6
    s_lshl_b32 s38, s12, 1
    s_add_u32 s38, s38, s15
    s_mul_i32 s38, s38, 307200
    s_mul_i32 s39, s13, 6144
    s_mul_i32 s40, s14, 3072
    s_add_u32 s38, s38, s39
    s_add_u32 s38, s38, s40
    s_add_u32 s39, s38, 153600
    s_nop 7''')
    T = 128
    def gelu(n):
        fb, tb = n//2, n % 2
        x = acc(fb, tb); t = T+16*(n % 3); o = T+48+8*(n % 2)
        pre = [f'v_pk_mul_f32 {vr(t+2*k,2)}, {vr(x+2*k,2)}, {vr(x+2*k,2)}' for k in range(8)]
        pre += [f'v_pk_fma_f32 {vr(t+2*k,2)}, {vr(t+2*k,2)}, s[42:43], v[8:9]' for k in range(8)]
        pre += [f'v_pk_mul_f32 {vr(t+2*k,2)}, {vr(t+2*k,2)}, {vr(x+2*k,2)}' for k in range(8)]
        ex = [f'v_exp_f32 v{t+k}, v{t+k}' for k in range(16)]
        ad = [f'v_pk_add_f32 {vr(t+2*k,2)}, {vr(t+2*k,2)}, 1.0 op_sel_hi:[1,0]' for k in range(8)]
        rc = [f'v_rcp_f32 v{t+k}, v{t+k}' for k in range(16)]
        post = [f'v_pk_mul_f32 {vr(t+2*k,2)}, {vr(t+2*k,2)}, {vr(x+2*k,2)}' for k in range(8)]
        post += [f'v_cvt_pk_bf16_f32 v{o+k}, v{t+2*k}, v{t+2*k+1}' for k in range(8)]
        post += [f'buffer_store_dwordx4 {vr(o+4*tt,4)}, v6, s[28:31], s{38+tb} offen offset:{fb*1024+tt*256} {ST}' for tt in range(2)]
        return pre, ex, ad, rc, post
    def mix(tr, va):
        k = 0
        for i, x in enumerate(tr):
            a(x)
            e = len(va)*(i+1)//len(tr)
            while k < e: a(va[k]); k += 1
    G = [gelu(n) for n in range(6)]
    if a.opts.get('gi'):
        for x in G[0][0]: a(x)
        for n in range(6):
            prev = G[n-1][4] if n else []
            nxt = G[n+1][0] if n < 5 else []
            mix(G[n][1], prev+nxt[:4])
            for x in G[n][2][:2]: a(x)
            mix(G[n][3][:3], G[n][2][2:])
            mix(G[n][3][3:], nxt[4:])
        a('s_nop 0')
        for x in G[5][4]: a(x)
    else:
        for g in G:
            for p in g:
                for x in p: a(x)
    a.stamp(5)
    a.end()

def gen_fft(a, ST):
    a.cpf('K2_FFT', 'K2_SIDE', 1, vt=250, dst=16)
    a(f'''s_sub_u32 s12, s2, 144
    s_lshl_b32 s13, s12, 2
    s_add_u32 s13, s13, s3
    s_lshl_b32 s14, s13, 13
    s_add_u32 s15, s14, 4096
    s_mov_b32 s33, s15
    s_cmp_eq_u32 s13, 0
    s_cselect_b32 s15, {OOB}, s15
    s_cmp_ge_u32 s13, 320
    s_cselect_b32 s15, {OOB}, s15
    v_and_b32 v3, 31, v2
    v_lshrrev_b32 v4, 5, v2
    v_lshlrev_b32 v5, 6, v3
    v_lshl_add_u32 v5, v4, 5, v5
    v_lshlrev_b32 v6, 4, v2
    s_waitcnt lgkmcnt(0)''')
    a.srd(16, 10, X1T_SZ, X1T_OFF); a.srd(20, 10, WT_SZ, WT_OFF); a.srd(28, 10, AF_SZ, AF_OFF)
    aXr = lambda b, t: ar(8*b+4*t, 4)
    aXi = lambda b, t: ar(16+8*b+4*t, 4)
    aC1, aS1, aN1, aC2, aS2 = 32, 40, 48, 56, 88
    c2 = lambda base, b, bp, t: ar(base+16*b+8*bp+4*t, 4)
    W = 16; ACC = 48; PK = 112; TW = 160
    for b in range(2):
        for t in range(2):
            a(f'buffer_load_dwordx4 {aXr(b,t)}, v5, s[16:19], s14 offen offset:{b*2048+t*16}')
            a(f'buffer_load_dwordx4 {aXi(b,t)}, v5, s[16:19], s15 offen offset:{b*2048+t*16}')
    for b in range(2):
        for g in range(4):
            a(f'buffer_load_dwordx4 {vr(W+16*b+4*g,4)}, v6, s[20:23], s{14 if b==0 else 33} offen offset:{g*1024}')
    a(f'''v_cvt_f32_u32 v7, v3
    v_lshlrev_b32 v8, 2, v4
    v_cvt_f32_u32 v8, v8
    v_and_b32 v15, 1, v2
    v_mul_u32_u24 v15, 0x8000, v15
    v_lshl_or_b32 v15, v15, 16, v15''')
    R = lambda e: 8*(e//4)+e % 4
    def angles(dst, scale, ladd=0.0, extra=None):
        a(f'v_add_f32 v9, {fx(ladd)}, v7\nv_mul_f32 v9, {fx(scale)}, v9\nv_mul_f32 v10, v9, v8')
        if extra: a(f'v_fmamk_f32 v10, v7, {fx(extra)}, v10')
        for e in range(16): a(f'v_fmamk_f32 v{dst+e}, v9, {fx(float(R(e)))}, v10')
    T0, T1, T2 = ACC, ACC+16, ACC+32
    P = PK
    angles(T0, 1/32)
    for e in range(16): a(f'v_cos_f32 v{T1+e}, v{T0+e}\nv_sin_f32 v{T2+e}, v{T0+e}')
    for k in range(8): a(f'v_cvt_pk_bf16_f32 v{P+k}, v{T1+2*k}, v{T1+2*k+1}\nv_cvt_pk_bf16_f32 v{P+8+k}, v{T2+2*k}, v{T2+2*k+1}\nv_cvt_pk_bf16_f32 v{P+16+k}, -v{T2+2*k}, -v{T2+2*k+1}')
    for k in range(24): a(f'v_accvgpr_write_b32 a{aC1+k}, v{P+k}')
    tw = lambda s, e: (TW+32*s+e, TW+32*s+16+e)
    for s_, (ladd, extra) in enumerate([(0.0, None), (0.0, 1/64), (32.0, None)]):
        angles(T0, 1/2048, ladd, extra)
        for e in range(16): a(f'v_cos_f32 v{tw(s_,e)[0]}, v{T0+e}\nv_sin_f32 v{tw(s_,e)[1]}, v{T0+e}')
    angles(T0, 1/64)
    for e in range(16): a(f'v_cos_f32 v{T1+e}, v{T0+e}\nv_sin_f32 v{T2+e}, v{T0+e}')
    for k in range(8): a(f'v_cvt_pk_bf16_f32 v{P+k}, v{T1+2*k}, v{T1+2*k+1}\nv_cvt_pk_bf16_f32 v{P+8+k}, v{T2+2*k}, v{T2+2*k+1}')
    for m, base in enumerate([aC2, aS2]):
        for k in range(8):
            s_ = P+8*m+k
            a(f'''v_xor_b32 v11, v15, v{s_}
            v_xor_b32 v12, 0x80000000, v{s_}
            v_accvgpr_write_b32 a{base+k}, v{s_}
            v_xor_b32 v13, 0x80000000, v11
            v_accvgpr_write_b32 a{base+8+k}, v11
            v_accvgpr_write_b32 a{base+16+k}, v12
            v_accvgpr_write_b32 a{base+24+k}, v13''')
    aR = lambda b: ACC+32*b
    aI = lambda b: ACC+32*b+16
    pk = lambda which, b, t=0: PK+16*which+8*b+4*t
    def mm(d, terms):
        for i, (x, y) in enumerate(terms):
            a(f'v_mfma_f32_32x32x16_bf16 {vr(d,16)}, {x}, {y}, {vr(d,16) if i else 0}')
    def cmul(b, getw, conj, neg):
        for e0 in range(0, 16, 4):
            ws = [getw(e0+j, j) for j in range(4)]
            for j in range(4):
                e = e0+j; c, s_ = ws[j]
                a(f'v_mul_f32 v{8+j}, v{aI(b)+e}, v{s_}\nv_mul_f32 v{12+j}, v{aR(b)+e}, v{s_}')
            for j in range(4):
                e = e0+j; c, s_ = ws[j]
                if conj:
                    a(f'v_fma_f32 v{aR(b)+e}, v{aR(b)+e}, v{c}, v{8+j}\nv_fma_f32 v{aI(b)+e}, v{aI(b)+e}, v{c}, -v{12+j}')
                else:
                    a(f'v_fma_f32 v{aR(b)+e}, v{aR(b)+e}, v{c}, -v{8+j}\nv_fma_f32 v{aI(b)+e}, v{aI(b)+e}, v{c}, v{12+j}')
        for k in range(8):
            r_, i_ = aR(b)+2*k, aI(b)+2*k
            a(f'v_cvt_pk_bf16_f32 v{pk(0,b)+k}, v{r_}, v{r_+1}\nv_cvt_pk_bf16_f32 v{pk(1,b)+k}, v{i_}, v{i_+1}')
            if neg is not None:
                q = r_ if neg == 'r' else i_
                a(f'v_cvt_pk_bf16_f32 v{pk(2,b)+k}, -v{q}, -v{q+1}')
    V4 = lambda r: vr(r, 4)
    a.stamp(1)
    a('s_waitcnt vmcnt(8)')
    a.stamp(2)
    for b in range(2):
        mm(aR(b), [(aXr(b,t), ar(aC1+4*t,4)) for t in range(2)]+[(aXi(b,t), ar(aS1+4*t,4)) for t in range(2)])
        mm(aI(b), [(aXi(b,t), ar(aC1+4*t,4)) for t in range(2)]+[(aXr(b,t), ar(aN1+4*t,4)) for t in range(2)])
    a('s_nop 7')
    for b in range(2):
        if b: a('s_nop 3')
        cmul(b, lambda e, j: tw(b, e), True, 'r')
    a('s_nop 1')
    ST4 = [(bp, t) for bp in range(2) for t in range(2)]
    for b in range(2):
        mm(aR(b), [(c2(aC2,b,bp,t), V4(pk(0,bp,t))) for bp, t in ST4]+[(c2(aS2,b,bp,t), V4(pk(1,bp,t))) for bp, t in ST4])
        mm(aI(b), [(c2(aC2,b,bp,t), V4(pk(1,bp,t))) for bp, t in ST4]+[(c2(aS2,b,bp,t), V4(pk(2,bp,t))) for bp, t in ST4])
    a.stamp(3)
    a('s_waitcnt vmcnt(0)\ns_nop 7\ns_nop 3')
    for b in range(2):
        def gw(e, j):
            w = W+16*b+e; c, s_ = TW+32+j, TW+36+j
            a(f'v_lshlrev_b32 v{c}, 16, v{w}\nv_and_b32 v{s_}, 0xffff0000, v{w}')
            return (c, s_)
        cmul(b, gw, False, 'i')
    a('s_nop 1')
    for b in range(2):
        mm(aR(b), [(V4(pk(0,bp,t)), c2(aC2,b,bp,t)) for bp, t in ST4]+[(V4(pk(2,bp,t)), c2(aS2,b,bp,t)) for bp, t in ST4])
        mm(aI(b), [(V4(pk(1,bp,t)), c2(aC2,b,bp,t)) for bp, t in ST4]+[(V4(pk(0,bp,t)), c2(aS2,b,bp,t)) for bp, t in ST4])
    a('s_nop 7\ns_nop 3')
    for b in range(2): cmul(b, lambda e, j: tw(2*b, e), False, None)
    a('s_nop 1')
    for b in range(2):
        mm(aR(b), [(ar(aC1+4*t,4), V4(pk(0,b,t))) for t in range(2)]+[(ar(aN1+4*t,4), V4(pk(1,b,t))) for t in range(2)])
        mm(aI(b), [(ar(aC1+4*t,4), V4(pk(1,b,t))) for t in range(2)]+[(ar(aS1+4*t,4), V4(pk(0,b,t))) for t in range(2)])
    a.stamp(4)
    a('''v_mul_u32_u24 v5, 4160, v4
    v_lshl_add_u32 v5, v3, 4, v5
    s_lshl_b32 s14, s3, 2
    v_add_u32 v5, s14, v5
    v_and_b32 v6, 31, v0
    v_mul_u32_u24 v6, 1040, v6
    v_lshrrev_b32 v7, 5, v0
    v_lshl_add_u32 v6, v7, 4, v6
    v_lshrrev_b32 v7, 4, v0
    v_mul_u32_u24 v7, 76800, v7
    v_and_b32 v8, 15, v0
    v_lshl_add_u32 v7, v8, 4, v7
    s_lshl_b32 s14, s12, 8
    s_add_u32 s14, s14, 55296''')
    for b in range(2):
        if b: a('s_nop 7')
        for e in range(16):
            a(f'v_cvt_pk_bf16_f32 v{PK+16*b+e}, v{aR(b)+e}, v{aI(b)+e}')
        for e in range(16):
            a(f'ds_write_b32 v5, v{PK+16*b+e} offset:{(R(e)*65+32*b)*16}')
    a('s_waitcnt lgkmcnt(0)\ns_barrier')
    a.stamp(5)
    for r in range(8): a(f'ds_read_b128 {vr(16+4*r,4)}, v6 offset:{r*128}')
    a('s_mov_b32 s15, s14')
    for r in range(8):
        a(f's_waitcnt lgkmcnt({7-r})\nbuffer_store_dwordx4 {vr(16+4*r,4)}, v7, s[28:31], s15 offen {ST}\ns_add_u32 s15, s15, {16*76800}')
    a('s_cmp_lg_u32 s12, 80\ns_cbranch_scc1 K2_FEND')
    for k in range(4): a(f'v_mov_b32 v{60+k}, 0')
    for r in range(8):
        for q in range(1, 4): a(f'buffer_store_dwordx4 v[60:63], v7, s[28:31], s14 offen offset:{q*256} {ST}')
        a(f's_add_u32 s14, s14, {16*76800}')
    a('K2_FEND:')
    a.end()

def gen_side(a, ST):
    a.cpf('K2_SIDE', 'K2_END', 1, vt=250)
    a('''s_sub_u32 s12, s2, 225
    s_mul_i32 s13, s12, 81920
    s_mul_i32 s14, s3, 20480
    s_add_u32 s13, s13, s14
    v_lshlrev_b32 v3, 4, v2
    s_waitcnt lgkmcnt(0)''')
    a.srd(16, 8, 1728*1280); a.srd(20, 10, BF_SZ, BF_OFF)
    for p in range(5):
        a(f's_add_u32 m0, s14, {p*4096}\ns_add_u32 s15, s13, {p*4096}')
        for k in range(4): a(f'buffer_load_dwordx4 v3, s[16:19], s15 offen offset:{k*1024} lds')
    sc = 1.0/(320*2048)
    a(f'''s_lshl_b32 s24, s12, 2
    s_add_u32 s24, s24, s3
    s_cmp_ge_u32 s24, 105
    s_cbranch_scc1 K2_S_NOTG
    s_mul_i32 s25, s24, 52429
    s_lshr_b32 s25, s25, 18
    s_mul_i32 s26, s25, 5
    s_sub_u32 s26, s24, s26
    v_and_b32 v4, 15, v2
    v_lshrrev_b32 v5, 4, v2
    v_lshrrev_b32 v6, 2, v4
    v_mul_u32_u24 v6, 20, v6
    v_and_b32 v4, 3, v4
    v_add_u32 v4, v4, v6
    s_lshl_b32 s27, s26, 2
    v_add_u32 v4, s27, v4
    v_cvt_f32_u32 v4, v4
    s_lshl_b32 s27, s25, 4
    v_lshl_add_u32 v5, v5, 2, s27
    v_mov_b32 v7, {fx(sc)}
    v_mov_b32 v8, {fx(sc/2)}
    v_mov_b32 v9, {fx(-sc)}
    s_mul_i32 s27, s26, 76800
    s_add_u32 s25, s25, 54
    s_lshl_b32 s25, s25, 10
    s_add_u32 s27, s27, s25''')
    for cc in range(4):
        a(f'''v_add_u32 v6, {cc}, v5
        v_cvt_f32_u32 v{16+cc}, v6
        v_cmp_eq_u32 vcc, 0, v6
        v_cmp_le_u32 s[28:29], v10, v6
        v_cmp_lt_u32 s[30:31], v10, v6
        s_or_b64 s[28:29], s[28:29], vcc
        s_nop 1
        v_cndmask_b32 v{20+cc}, v7, v8, s[28:29]
        v_cndmask_b32 v{24+cc}, v9, 0, s[28:29]
        v_cndmask_b32 v{20+cc}, v{20+cc}, 0, s[30:31]'''.replace('v_add_u32 v6', 'v_mov_b32 v10, 320\nv_add_u32 v6'))
    for nt in range(8):
        a(f'v_add_f32 v11, {fx(80.0*nt)}, v4')
        for cc in range(4): a(f'v_mul_f32 v{28+cc}, v11, v{16+cc}')
        for cc in range(4): a(f'v_mul_f32 v{28+cc}, {fx(1/640)}, v{28+cc}')
        for cc in range(4): a(f'v_fract_f32 v{28+cc}, v{28+cc}')
        for cc in range(4): a(f'v_cos_f32 v{32+cc}, v{28+cc}\nv_sin_f32 v{36+cc}, v{28+cc}')
        for cc in range(4): a(f'v_mul_f32 v{32+cc}, v{32+cc}, v{20+cc}\nv_mul_f32 v{36+cc}, v{36+cc}, v{24+cc}')
        o = 40+4*nt
        for cc in range(4): a(f'v_cvt_pk_bf16_f32 v{o+cc}, v{32+cc}, v{36+cc}')
        a(f'buffer_store_dwordx4 {vr(o,4)}, v3, s[20:23], s27 offen {ST}\ns_add_u32 s27, s27, {5*76800}')
    a('''K2_S_NOTG:
    v_bfe_u32 v4, v2, 4, 1
    v_lshrrev_b32 v5, 5, v2
    v_bfe_u32 v6, v2, 2, 2
    v_and_b32 v7, 3, v2
    v_lshl_add_u32 v6, v5, 2, v6
    v_lshl_add_u32 v6, v4, 4, v6
    v_mul_u32_u24 v6, 1280, v6
    v_mul_u32_u24 v7, 40, v7
    s_mul_i32 s14, s3, 320
    v_add3_u32 v6, v6, v7, s14
    v_add_u32 v7, 40960, v6
    s_mul_i32 s15, s3, 768000
    s_lshl_b32 s13, s12, 11
    s_add_u32 s15, s15, s13
    s_waitcnt vmcnt(0)
    s_barrier''')
    a.stamp(2)
    for ks in range(2):
        for nb in range(10):
            o = 80+40*ks+4*nb
            off = (nb//5)*160+(nb % 5)*8
            for u in range(2): a(f'ds_read_b64_tr_b16 {vr(o+2*u,2)}, v{6+ks} offset:{off+u*10240}')
        a('s_waitcnt lgkmcnt(0)')
        for nb in range(10):
            o = 80+40*ks+4*nb
            a(f's_add_u32 s13, s15, {nb*76800+ks*1024}\nbuffer_store_dwordx4 {vr(o,4)}, v3, s[20:23], s13 offen {ST}')
    a.end()

def gen_k2(a, ST=''):
    header(a, 'k2_kernel')
    a(f'''s_cmp_ge_u32 s2, {a.opts.get('k2n', 252)}
    s_cbranch_scc1 K2_END
    s_load_dwordx4 s[4:7], s[0:1], 32
    s_load_dwordx2 s[8:9], s[0:1], 48
    s_load_dwordx2 s[10:11], s[0:1], 80
    v_lshrrev_b32 v1, 6, v0
    v_and_b32 v2, 63, v0
    v_readfirstlane_b32 s3, v1
    s_cmp_ge_u32 s2, 225
    s_cbranch_scc1 K2_SIDE
    s_cmp_ge_u32 s2, 144
    s_cbranch_scc1 K2_FFT''')
    gen_gemm1(a, ST)
    a('K2_FFT:'); gen_fft(a, ST)
    a('K2_SIDE:'); gen_side(a, ST)
    a('K2_END:\ns_endpgm')
    return descriptor('k2_kernel', 256+120, 256)
```

```python
import struct
def f2u(x): return struct.unpack('<I', struct.pack('<f', x))[0]
def fx(x): return '0x%08x' % f2u(x)
X1T_OFF, X1T_SZ = 0x0, 642*4096
WT_OFF,  WT_SZ  = 0x300000, 321*8192
YF_OFF,  YF_SZ  = 0x600000, 64*40*1024
AF_OFF,  AF_SZ  = 0x900000, 128*75*1024
BF_OFF,  BF_SZ  = 0x1300000, 40*75*1024
OOB = 0x40000000
DBG_OFF = 0x1700000
class Asm:
    def __init__(s): s.l = []; s.diag = False; s.kid = 0
    def stamp(s, k):
        if s.diag: s(f's_memrealtime s[{60+2*k}:{61+2*k}]\ns_waitcnt lgkmcnt(0)')
    def end(s, wait=True):
        if s.diag:
            s('s_waitcnt vmcnt(0)')
            s.stamp(7)
            s(f'''s_load_dwordx2 s[92:93], s[0:1], 80
            s_waitcnt lgkmcnt(0)''')
            s.srd(88, 92, 0x100000, DBG_OFF)
            s(f'''s_lshl_b32 s92, s2, 2
            s_add_u32 s92, s92, s3
            s_lshl_b32 s92, s92, 5
            s_add_u32 s92, s92, {s.kid*0x10000}
            v_mov_b32 v1, 0
            s_mov_b64 exec, 1''')
            for k in range(8): s(f'v_mov_b32 v2, s{60+2*k}\nbuffer_store_dword v2, v1, s[88:91], s92 offen offset:{4*k}')
        s('s_endpgm')
    def __call__(s, t):
        for x in t.strip('\n').split('\n'):
            x = x.strip()
            if x: s.l.append(x if x.endswith(':') or x.startswith('.') else '    ' + x)
    def text(s): return '\n'.join(s.l) + '\n'
    def srd(s, d, p, size, off=0):
        if off:
            s(f's_add_u32 s{d}, s{p}, 0x{off:x}\ns_addc_u32 s{d+1}, s{p+1}, 0')
        else:
            s(f's_mov_b32 s{d}, s{p}\ns_mov_b32 s{d+1}, s{p+1}')
        s(f's_mov_b32 s{d+2}, 0x{size:x}\ns_mov_b32 s{d+3}, 0x00020000')
def vr(b, n=1): return f'v{b}' if n == 1 else f'v[{b}:{b+n-1}]'
def ar(b, n=1): return f'a{b}' if n == 1 else f'a[{b}:{b+n-1}]'
def header(a, name):
    a(f'.globl {name}\n.p2align 8\n.type {name},@function\n{name}:')
    a.kid = int(name[1])-1
    a.stamp(0)
    if a.diag:
        for k in range(1, 8): a(f's_mov_b32 s{60+2*k}, s60')
def descriptor(name, vgpr, accum, sgpr=96):
    return f'''.amdhsa_kernel {name}
  .amdhsa_next_free_vgpr {vgpr}
  .amdhsa_next_free_sgpr {sgpr}
  .amdhsa_accum_offset {accum}
  .amdhsa_group_segment_fixed_size 0
  .amdhsa_kernarg_size 88
  .amdhsa_user_sgpr_count 2
  .amdhsa_user_sgpr_kernarg_segment_ptr 1
  .amdhsa_system_sgpr_workgroup_id_x 1
.end_amdhsa_kernel
'''
```

```python
from common import *
def gen_k1(a, ST=''):
    header(a, 'k1_kernel')
    a('''s_cmp_ge_u32 s2, 416
    s_cbranch_scc1 K1_END
    s_load_dwordx4 s[4:7], s[0:1], 0
    s_load_dwordx2 s[8:9], s[0:1], 16
    s_load_dwordx2 s[10:11], s[0:1], 80
    v_lshrrev_b32 v1, 6, v0
    v_and_b32 v2, 63, v0
    v_readfirstlane_b32 s3, v1
    s_cmp_ge_u32 s2, 320
    s_cbranch_scc1 K1_TR''')
    a('''s_and_b32 s12, s2, 7
    s_lshl_b32 s12, s12, 3
    s_lshr_b32 s13, s2, 3
    s_and_b32 s15, s13, 7
    s_add_u32 s12, s12, s15
    s_lshr_b32 s13, s13, 3
    v_lshrrev_b32 v3, 3, v0
    v_and_b32 v4, 7, v0
    v_lshlrev_b32 v5, 6, v3
    v_add_u32 v5, s12, v5
    v_mul_u32_u24 v5, 1280, v5
    v_lshl_add_u32 v5, v4, 4, v5
    s_waitcnt lgkmcnt(0)''')
    a.srd(16, 4, 2048*1280)
    a.srd(20, 10, X1T_SZ, X1T_OFF)
    a.srd(24, 10, YF_SZ, YF_OFF)
    XF = 16
    TF = 96
    TM = 176
    D = 208
    for t in range(10):
        a(f'buffer_load_dwordx4 {vr(XF+8*t+4,4)}, v5, s[16:19], 0 offen offset:{t*128}')
    a(f'''s_lshl_b32 s15, s13, 2
    s_add_u32 s15, s15, s3
    s_cmp_ge_u32 s15, 10
    s_cselect_b32 s14, 1, 0
    s_mul_i32 s31, s14, 10
    s_sub_u32 s15, s15, s31
    s_mul_i32 s31, s14, 20480
    s_lshl_b32 s15, s15, 5
    v_and_b32 v6, 31, v2
    v_add_u32 v6, s15, v6
    v_and_b32 v7, 1, v6
    v_and_b32 v8, 0xfffffffe, v6
    v_add_u32 v8, s14, v8
    v_lshl_add_u32 v9, v8, 1, v7
    v_cmp_eq_u32 vcc, 1, v9
    v_mov_b32 v10, 320
    v_lshrrev_b32 v11, 5, v2
    v_cndmask_b32 v8, v8, v10, vcc
    v_cndmask_b32 v7, v7, 0, vcc
    v_lshl_add_u32 v9, v8, 1, v7
    v_lshlrev_b32 v9, 12, v9
    v_lshl_add_u32 v9, v11, 5, v9
    s_lshl_b32 s15, s12, 6
    v_add_u32 v9, s15, v9
    v_cvt_f32_u32 v8, v8
    v_cvt_f32_u32 v7, v7
    v_cvt_f32_u32 v10, v11
    v_mul_f32 v8, {fx(1/640)}, v8
    v_mul_f32 v7, 0.25, v7
    v_mul_f32 v10, {fx(8.0)}, v10
    v_fmac_f32 v7, v10, v8'''.replace('0.25', fx(0.25)))
    for t in range(20):
        for j in range(8): a(f'v_fmamk_f32 v{TM+j}, v8, {fx(float(16*t+j))}, v7')
        for j in range(8): a(f'v_cos_f32 v{TM+j}, v{TM+j}')
        for j in range(4): a(f'v_cvt_pk_bf16_f32 v{TF+4*t+j}, v{TM+2*j}, v{TM+2*j+1}')
    a.stamp(1)
    a('v_and_b32 v6, 31, v2')
    for e in range(4):
        a(f'''v_add_u32 v10, {2*e}, v11
        v_xor_b32 v10, v10, v6
        v_lshlrev_b32 v10, 4, v10
        v_lshl_add_u32 v10, v11, 9, v10
        v_add_u32 v10, s31, v10
        v_add_u32 v{12+e}, {e*1024}, v10''')
    for t in range(10):
        a(f's_waitcnt vmcnt({9-t})')
        for k in range(4):
            src = XF+8*t+4+k
            a(f'v_lshlrev_b32 v{XF+8*t+2*k}, 16, v{src}\nv_and_b32 v{XF+8*t+2*k+1}, 0xffff0000, v{src}')
    a.stamp(2)
    P = lambda i: vr(XF+2*i, 2)
    for k in range(4): a(f'v_pk_add_f32 {vr(TM+2*k,2)}, {P(k)}, {P(k+4)}')
    for i in range(8, 40): a(f'v_pk_add_f32 {vr(TM+2*(i%4),2)}, {vr(TM+2*(i%4),2)}, {P(i)}')
    def red(dst):
        a(f'''v_pk_add_f32 {vr(TM,2)}, {vr(TM,2)}, {vr(TM+2,2)}
        v_pk_add_f32 {vr(TM+4,2)}, {vr(TM+4,2)}, {vr(TM+6,2)}
        s_nop 0
        v_pk_add_f32 {vr(TM,2)}, {vr(TM,2)}, {vr(TM+4,2)}
        s_nop 0
        v_add_f32 v{TM}, v{TM}, v{TM+1}
        s_nop 1
        v_add_f32_dpp v{TM+1}, v{TM}, v{TM} quad_perm:[1,0,3,2] row_mask:0xf bank_mask:0xf
        s_nop 1
        v_add_f32_dpp v{TM}, v{TM+1}, v{TM+1} quad_perm:[2,3,0,1] row_mask:0xf bank_mask:0xf
        s_nop 1
        v_add_f32_dpp v{TM+1}, v{TM}, v{TM} row_half_mirror row_mask:0xf bank_mask:0xf
        v_mul_f32 v{dst}, {fx(1/640)}, v{TM+1}''')
    M = TM+8
    red(M+2)
    a(f'v_sub_f32 v{M}, 0, v{M+2}\nv_sub_f32 v{M+1}, 0, v{M+2}')
    for i in range(40):
        d = vr(D+2*(i % 8), 2)
        a(f'v_pk_add_f32 {d}, {P(i)}, {vr(M,2)}')
        if i >= 4:
            k = i-4; dk = vr(D+2*(k % 8), 2); acc = vr(TM+2*(k % 4), 2)
            a(f'v_pk_mul_f32 {acc}, {dk}, {dk}' if k < 4 else f'v_pk_fma_f32 {acc}, {dk}, {dk}, {acc}')
    for k in range(36, 40):
        dk = vr(D+2*(k % 8), 2); acc = vr(TM+2*(k % 4), 2)
        a(f'v_pk_fma_f32 {acc}, {dk}, {dk}, {acc}')
    red(M+3)
    def rbf(dst, src):
        a(f'v_cvt_pk_bf16_f32 v{dst}, v{src}, v{src}\nv_and_b32 v{dst}, 0xffff0000, v{dst}')
    def rstd(dst, var):
        rbf(dst, var)
        a(f'v_add_f32 v{dst}, {fx(1e-5)}, v{dst}')
        rbf(dst, dst)
        a(f'v_sqrt_f32 v{dst}, v{dst}\ns_nop 0')
        rbf(dst, dst)
        a(f'v_rcp_f32 v{dst}, v{dst}\ns_nop 0')
    MB, R, OF, SG, M2, V2, R2, YA, YB = M+4, M+6, M+8, M+10, M+12, M+13, M+14, M+16, M+18
    rbf(MB, M+2); rstd(R, M+3)
    a(f'''v_mov_b32 v{R+1}, v{R}
    v_mul_f32 v{OF}, v{MB}, v{R}
    v_sub_f32 v{M2}, v{M+2}, v{MB}
    v_mul_f32 v{M2}, v{M2}, v{R}
    v_mul_f32 v{V2}, v{M+3}, v{R}
    v_mul_f32 v{V2}, v{V2}, v{R}
    v_mov_b32 v{YB}, v{OF}
    v_mul_f32 v{OF}, -2.0, v{OF}
    v_mov_b32 v{OF+1}, v{OF}
    v_lshlrev_b32 v10, 9, v4
    v_xor_b32 v6, v3, v4
    v_lshl_add_u32 v6, v6, 4, v10''')
    for t in range(5):
        for k in range(4):
            i = 4*t+k
            a(f'v_pk_add_f32 {vr(D+2*k,2)}, {P(i)}, {P(i+20)}')
            a(f'v_pk_add_f32 {vr(D+8+2*k,2)}, {P(i)}, {P(i+20)} neg_lo:[0,1] neg_hi:[0,1]')
        for k in range(4):
            a(f'v_pk_fma_f32 {vr(D+2*k,2)}, {vr(D+2*k,2)}, {vr(R,2)}, {vr(OF,2)}')
            a(f'v_pk_mul_f32 {vr(D+8+2*k,2)}, {vr(D+8+2*k,2)}, {vr(R,2)}')
        o = D+16+8*(t%2)
        for k in range(8): a(f'v_cvt_pk_bf16_f32 v{o+k}, v{D+2*k}, v{D+2*k+1}')
        a(f'ds_write_b128 v6, {vr(o,4)} offset:{t*4096}')
        a(f'ds_write_b128 v6, {vr(o+4,4)} offset:{20480+t*4096}')
    rbf(M2, M2); rstd(R2, V2)
    a(f'''v_add_f32 v{YB}, v{YB}, v{M2}
    v_mul_f32 v{YA}, v{R}, v{R2}
    v_mul_f32 v{YB}, v{YB}, v{R2}
    v_mov_b32 v{YA+1}, v{YA}
    v_sub_f32 v{YB}, 0, v{YB}
    v_lshl_add_u32 v10, v3, 4, v10
    v_mov_b32 v{YB+1}, v{YB}
    s_mul_i32 s15, s12, 40960
    s_lshl_b32 s28, s13, 13
    s_add_u32 s15, s15, s28
    s_add_u32 s28, s15, 4096''')
    for nt in range(5):
        if nt < 4: a(f's_cmp_lg_u32 s13, {nt}\ns_cbranch_scc1 K1_Y{nt+1}')
        for k in range(8): a(f'v_pk_fma_f32 {vr(D+2*k,2)}, {P(8*nt+k)}, {vr(YA,2)}, {vr(YB,2)}')
        if nt < 4: a(f's_branch K1_YS\nK1_Y{nt+1}:')
    a('K1_YS:')
    for k in range(8): a(f'v_cvt_pk_bf16_f32 v{TM+k}, v{D+2*k}, v{D+2*k+1}')
    a(f'buffer_store_dwordx4 {vr(TM,4)}, v10, s[24:27], s15 offen {ST}')
    a(f'buffer_store_dwordx4 {vr(TM+4,4)}, v10, s[24:27], s28 offen {ST}')
    a.stamp(3)
    a('s_waitcnt lgkmcnt(0)\ns_barrier')
    a.stamp(4)
    for ks in range(20): a(f'ds_read_b128 {vr(XF+4*ks,4)}, v{12+ks%4} offset:{(ks//4)*4096}')
    AC = D
    for ks in range(20):
        a(f's_waitcnt lgkmcnt({min(15,19-ks)})')
        a(f'v_mfma_f32_32x32x16_bf16 {vr(AC,16)}, {vr(XF+4*ks,4)}, {vr(TF+4*ks,4)}, {vr(AC,16) if ks else 0}')
    a('s_nop 7\ns_nop 3')
    a.stamp(5)
    for k in range(8): a(f'v_cvt_pk_bf16_f32 v{D+16+k}, v{AC+2*k}, v{AC+2*k+1}')
    a(f'''buffer_store_dwordx4 {vr(D+16,4)}, v9, s[20:23], 0 offen {ST}
    buffer_store_dwordx4 {vr(D+20,4)}, v9, s[20:23], 0 offen offset:16 {ST}''')
    a.end()
    a('''K1_TR:
    s_sub_u32 s12, s2, 320
    s_and_b32 s13, s12, 15
    s_lshr_b32 s12, s12, 4
    s_mul_i32 s12, s12, 54
    v_add_u32 v3, s12, v2
    v_lshlrev_b32 v3, 1, v3
    s_lshl_b32 s14, s13, 4
    s_add_u32 s14, s14, s3
    s_mul_i32 s14, s14, 5136
    s_waitcnt lgkmcnt(0)''')
    a.srd(16, 6, 2048*642); a.srd(20, 8, 2048*642); a.srd(24, 10, WT_SZ, WT_OFF)
    for k in range(8):
        for i in range(4):
            a(f'''s_add_u32 s15, s14, {(32*i+k)*642}
            buffer_load_ushort v{16+4*k+i}, v3, s[16:19], s15 offen
            buffer_load_ushort v{48+4*k+i}, v3, s[20:23], s15 offen''')
    a.stamp(1)
    a('''v_mul_u32_u24 v4, 528, v2
    s_lshl_b32 s15, s3, 7
    v_add_u32 v4, s15, v4
    v_lshrrev_b32 v7, 5, v0
    v_and_b32 v8, 31, v0
    v_mul_u32_u24 v5, 528, v7
    v_lshl_add_u32 v5, v8, 4, v5
    v_add_u32 v7, s12, v7
    v_lshlrev_b32 v6, 13, v7
    v_lshl_add_u32 v6, v8, 4, v6
    s_lshl_b32 s15, s13, 9''')
    for k in range(8):
        a(f's_waitcnt vmcnt({56-8*k})')
        for i in range(4): a(f'v_lshl_or_b32 v{16+4*k+i}, v{48+4*k+i}, 16, v{16+4*k+i}')
        a(f'ds_write_b128 v4, {vr(16+4*k,4)} offset:{k*16}')
    a.stamp(2)
    a('s_waitcnt lgkmcnt(0)\ns_barrier')
    a.stamp(3)
    for r in range(7): a(f'ds_read_b128 {vr(80+4*r,4)}, v5 offset:{r*8*528}')
    for r in range(7):
        a(f's_waitcnt lgkmcnt({6-r})\nbuffer_store_dwordx4 {vr(80+4*r,4)}, v6, s[24:27], s15 offen {ST}')
        if r < 6: a('s_add_u32 s15, s15, 0x10000')
    a.end()
    a('K1_END:\ns_endpgm')
    return descriptor('k1_kernel', 240, 240)
```

```python
from common import *
import math
def gen_gemm1(a, ST):
    a('''s_and_b32 s12, s2, 7
    s_lshr_b32 s13, s2, 3
    s_and_b32 s14, s13, 1
    s_lshl_b32 s12, s12, 1
    s_add_u32 s12, s12, s14
    s_lshr_b32 s13, s13, 1
    s_and_b32 s14, s3, 1
    s_lshr_b32 s15, s3, 1
    v_lshrrev_b32 v3, 3, v2
    v_and_b32 v4, 7, v2
    v_lshlrev_b32 v5, 1, v3
    v_and_b32 v5, 4, v5
    v_xor_b32 v4, v4, v5
    v_mul_u32_u24 v3, 3456, v3
    v_lshl_add_u32 v3, v4, 4, v3
    v_lshlrev_b32 v4, 4, v2
    v_lshrrev_b32 v5, 5, v2
    v_lshlrev_b32 v6, 3, v5
    s_mul_i32 s32, s3, 55296
    s_mul_i32 s33, s13, 384
    s_add_u32 s32, s32, s33
    s_lshl_b32 s34, s12, 2
    s_add_u32 s34, s34, s3
    s_mul_i32 s34, s34, 40960
    s_mul_i32 s35, s14, 192
    s_add_u32 s35, s35, s33
    s_lshl_b32 s36, s3, 11
    s_lshl_b32 s37, s3, 12
    s_add_u32 s37, s37, 24576
    s_waitcnt lgkmcnt(0)''')
    a.srd(16, 4, 640*3456); a.srd(20, 10, YF_SZ, YF_OFF); a.srd(24, 6, 3456); a.srd(28, 10, AF_SZ, AF_OFF)
    BI = 160
    for fb in range(3):
        for g in range(4):
            a(f'buffer_load_dwordx2 {vr(BI+8*fb+2*g,2)}, v6, s[24:27], s35 offen offset:{fb*64+g*16}')
    def dma(st):
        slot = (st % 4)*40960
        out = []
        for fp in range(3):
            for kk in range(2):
                out.append(f'''s_add_u32 m0, s36, {slot+fp*8192+kk*1024}
                s_add_u32 s38, s32, {st*64*3456+kk*8*3456+fp*128}
                buffer_load_dwordx4 v3, s[16:19], s38 offen lds''')
        out.append(f'''s_add_u32 m0, s37, {slot}
        s_add_u32 s38, s34, {st*4096}
        buffer_load_dwordx4 v4, s[20:23], s38 offen lds''')
        for ks in range(1, 4): out.append(f'buffer_load_dwordx4 v4, s[20:23], s38 offen offset:{ks*1024} lds')
        return out
    for st in range(4):
        for x in dma(st): a(x)
    a.stamp(1)
    a('''v_bfe_u32 v7, v2, 2, 2
    v_and_b32 v8, 3, v2
    v_bfe_u32 v9, v2, 4, 1
    v_lshlrev_b32 v10, 10, v5
    v_lshl_add_u32 v10, v7, 7, v10
    v_lshl_add_u32 v10, v9, 5, v10
    v_lshl_add_u32 v10, v8, 3, v10
    v_lshrrev_b32 v7, 1, v7
    v_xor_b32 v7, s14, v7
    v_lshl_add_u32 v11, v7, 6, v10
    v_xor_b32 v12, 64, v11
    s_lshl_b32 s39, s14, 13
    s_lshl_b32 s40, s15, 13
    s_add_u32 s40, s40, 24576''')
    WA = 16
    for sl in range(4):
        a(f'''s_add_u32 s41, s39, {sl*40960}
        v_add_u32 v{WA+4*sl}, s41, v11
        s_add_u32 s41, s41, s39
        v_add_u32 v{WA+4*sl+1}, s41, v12
        s_add_u32 s41, s40, {sl*40960}
        v_add_u32 v{WA+4*sl+2}, s41, v4''')
    AC = 32
    FR = 128
    FB = [192, 212]
    acc = lambda fb, tb: AC+32*fb+16*tb
    a('s_waitcnt vmcnt(40)')
    for fb in range(3):
        for g in range(4):
            for p in range(2):
                src = BI+8*fb+2*g+p
                for tb in range(2):
                    d = acc(fb, tb)+4*g+2*p
                    a(f'v_lshlrev_b32 v{d}, 16, v{src}\nv_and_b32 v{d+1}, 0xffff0000, v{src}')
    def reads(st, ks, buf):
        sl = st % 4; b = FB[buf]; out = []
        for tb in range(2): out.append(f'ds_read_b128 {vr(b+12+4*tb,4)}, v{WA+4*sl+2} offset:{tb*4096+ks*1024}')
        for fb in range(3):
            reg = WA+4*sl+(1 if fb == 1 else 0); off = ks*2048+(8192 if fb == 2 else 0)
            for u in range(2): out.append(f'ds_read_b64_tr_b16 {vr(b+4*fb+2*u,2)}, v{reg} offset:{off+u*512}')
        return out
    def mf(buf):
        b = FB[buf]
        return [f'v_mfma_f32_32x32x16_bf16 {vr(acc(fb,tb),16)}, {vr(b+4*fb,4)}, {vr(b+12+4*tb,4)}, {vr(acc(fb,tb),16)}' for fb in range(3) for tb in range(2)]
    def weave(m, f):
        n = len(m); k = 0
        for i, x in enumerate(m):
            a(x)
            e = (len(f)*(i+1)+n-1)//n
            while k < e: a(f[k]); k += 1
    a('s_waitcnt vmcnt(30)\ns_barrier')
    a.stamp(2)
    for x in reads(0, 0, 0): a(x)
    buf = 0
    for st in range(10):
        if st == 4: a.stamp(3)
        for ks in range(4):
            if ks < 3:
                a('s_waitcnt lgkmcnt(0)')
                weave(mf(buf), reads(st, ks+1, buf ^ 1))
            else:
                if st < 9:
                    rem = min(9, st+3)-(st+1)
                    a(f's_waitcnt lgkmcnt(0) vmcnt({10*rem})\ns_barrier')
                    f = reads(st+1, 0, buf ^ 1)
                    for x in f: a(x)
                    weave(mf(buf), dma(st+4) if st+4 <= 9 else [])
                else:
                    a('s_waitcnt lgkmcnt(0)')
                    weave(mf(buf), [])
            buf ^= 1
    a.stamp(4)
    c0 = -2*math.log2(math.e)*math.sqrt(2/math.pi); c1 = c0*0.044715
    a(f'''s_mov_b32 s42, {fx(c1)}
    s_mov_b32 s43, s42
    v_mov_b32 v8, {fx(c0)}
    v_mov_b32 v9, {fx(c0)}
    v_bfe_u32 v6, v2, 4, 1
    v_mul_u32_u24 v6, 76800, v6
    v_lshl_add_u32 v6, v5, 9, v6
    v_and_b32 v7, 15, v2
    v_lshl_add_u32 v6, v7, 4, v6
    s_lshl_b32 s38, s12, 1
    s_add_u32 s38, s38, s15
    s_mul_i32 s38, s38, 307200
    s_mul_i32 s39, s13, 6144
    s_mul_i32 s40, s14, 3072
    s_add_u32 s38, s38, s39
    s_add_u32 s38, s38, s40
    s_add_u32 s39, s38, 153600
    s_nop 7''')
    T = 128
    n = 0
    for fb in range(3):
        for tb in range(2):
            x = acc(fb, tb); t = T+16*(n % 2); o = T+32+8*(n % 2); n += 1
            for k in range(8): a(f'v_pk_mul_f32 {vr(t+2*k,2)}, {vr(x+2*k,2)}, {vr(x+2*k,2)}')
            for k in range(8): a(f'v_pk_fma_f32 {vr(t+2*k,2)}, {vr(t+2*k,2)}, s[42:43], v[8:9]')
            for k in range(8): a(f'v_pk_mul_f32 {vr(t+2*k,2)}, {vr(t+2*k,2)}, {vr(x+2*k,2)}')
            for k in range(16): a(f'v_exp_f32 v{t+k}, v{t+k}')
            for k in range(8): a(f'v_pk_add_f32 {vr(t+2*k,2)}, {vr(t+2*k,2)}, 1.0 op_sel_hi:[1,0]')
            for k in range(16): a(f'v_rcp_f32 v{t+k}, v{t+k}')
            for k in range(8): a(f'v_pk_mul_f32 {vr(t+2*k,2)}, {vr(t+2*k,2)}, {vr(x+2*k,2)}')
            for k in range(8): a(f'v_cvt_pk_bf16_f32 v{o+k}, v{t+2*k}, v{t+2*k+1}')
            for tt in range(2):
                a(f'buffer_store_dwordx4 {vr(o+4*tt,4)}, v6, s[28:31], s{38+tb} offen offset:{fb*1024+tt*256} {ST}')
    a.stamp(5)
    a.end()

def gen_fft(a, ST):
    a(f'''s_sub_u32 s12, s2, 144
    s_lshl_b32 s13, s12, 2
    s_add_u32 s13, s13, s3
    s_lshl_b32 s14, s13, 13
    s_add_u32 s15, s14, 4096
    s_mov_b32 s33, s15
    s_cmp_eq_u32 s13, 0
    s_cselect_b32 s15, {OOB}, s15
    s_cmp_ge_u32 s13, 320
    s_cselect_b32 s15, {OOB}, s15
    v_and_b32 v3, 31, v2
    v_lshrrev_b32 v4, 5, v2
    v_lshlrev_b32 v5, 6, v3
    v_lshl_add_u32 v5, v4, 5, v5
    v_lshlrev_b32 v6, 4, v2
    s_waitcnt lgkmcnt(0)''')
    a.srd(16, 10, X1T_SZ, X1T_OFF); a.srd(20, 10, WT_SZ, WT_OFF); a.srd(28, 10, AF_SZ, AF_OFF)
    aXr = lambda b, t: ar(8*b+4*t, 4)
    aXi = lambda b, t: ar(16+8*b+4*t, 4)
    aC1, aS1, aN1, aC2, aS2 = 32, 40, 48, 56, 88
    c2 = lambda base, b, bp, t: ar(base+16*b+8*bp+4*t, 4)
    W = 16; ACC = 48; PK = 112; TW = 160
    for b in range(2):
        for t in range(2):
            a(f'buffer_load_dwordx4 {aXr(b,t)}, v5, s[16:19], s14 offen offset:{b*2048+t*16}')
            a(f'buffer_load_dwordx4 {aXi(b,t)}, v5, s[16:19], s15 offen offset:{b*2048+t*16}')
    for b in range(2):
        for g in range(4):
            a(f'buffer_load_dwordx4 {vr(W+16*b+4*g,4)}, v6, s[20:23], s{14 if b==0 else 33} offen offset:{g*1024}')
    a(f'''v_cvt_f32_u32 v7, v3
    v_lshlrev_b32 v8, 2, v4
    v_cvt_f32_u32 v8, v8
    v_and_b32 v15, 1, v2
    v_mul_u32_u24 v15, 0x8000, v15
    v_lshl_or_b32 v15, v15, 16, v15''')
    R = lambda e: 8*(e//4)+e % 4
    def angles(dst, scale, ladd=0.0, extra=None):
        a(f'v_add_f32 v9, {fx(ladd)}, v7\nv_mul_f32 v9, {fx(scale)}, v9\nv_mul_f32 v10, v9, v8')
        if extra: a(f'v_fmamk_f32 v10, v7, {fx(extra)}, v10')
        for e in range(16): a(f'v_fmamk_f32 v{dst+e}, v9, {fx(float(R(e)))}, v10')
    T0, T1, T2 = ACC, ACC+16, ACC+32
    P = PK
    angles(T0, 1/32)
    for e in range(16): a(f'v_cos_f32 v{T1+e}, v{T0+e}\nv_sin_f32 v{T2+e}, v{T0+e}')
    for k in range(8): a(f'v_cvt_pk_bf16_f32 v{P+k}, v{T1+2*k}, v{T1+2*k+1}\nv_cvt_pk_bf16_f32 v{P+8+k}, v{T2+2*k}, v{T2+2*k+1}\nv_cvt_pk_bf16_f32 v{P+16+k}, -v{T2+2*k}, -v{T2+2*k+1}')
    for k in range(24): a(f'v_accvgpr_write_b32 a{aC1+k}, v{P+k}')
    tw = lambda s, e: (TW+32*s+e, TW+32*s+16+e)
    for s_, (ladd, extra) in enumerate([(0.0, None), (0.0, 1/64), (32.0, None)]):
        angles(T0, 1/2048, ladd, extra)
        for e in range(16): a(f'v_cos_f32 v{tw(s_,e)[0]}, v{T0+e}\nv_sin_f32 v{tw(s_,e)[1]}, v{T0+e}')
    angles(T0, 1/64)
    for e in range(16): a(f'v_cos_f32 v{T1+e}, v{T0+e}\nv_sin_f32 v{T2+e}, v{T0+e}')
    for k in range(8): a(f'v_cvt_pk_bf16_f32 v{P+k}, v{T1+2*k}, v{T1+2*k+1}\nv_cvt_pk_bf16_f32 v{P+8+k}, v{T2+2*k}, v{T2+2*k+1}')
    for m, base in enumerate([aC2, aS2]):
        for k in range(8):
            s_ = P+8*m+k
            a(f'''v_xor_b32 v11, v15, v{s_}
            v_xor_b32 v12, 0x80000000, v{s_}
            v_accvgpr_write_b32 a{base+k}, v{s_}
            v_xor_b32 v13, 0x80000000, v11
            v_accvgpr_write_b32 a{base+8+k}, v11
            v_accvgpr_write_b32 a{base+16+k}, v12
            v_accvgpr_write_b32 a{base+24+k}, v13''')
    aR = lambda b: ACC+32*b
    aI = lambda b: ACC+32*b+16
    pk = lambda which, b, t=0: PK+16*which+8*b+4*t
    def mm(d, terms):
        for i, (x, y) in enumerate(terms):
            a(f'v_mfma_f32_32x32x16_bf16 {vr(d,16)}, {x}, {y}, {vr(d,16) if i else 0}')
    def cmul(b, getw, conj, neg):
        for e0 in range(0, 16, 4):
            ws = [getw(e0+j, j) for j in range(4)]
            for j in range(4):
                e = e0+j; c, s_ = ws[j]
                a(f'v_mul_f32 v{8+j}, v{aI(b)+e}, v{s_}\nv_mul_f32 v{12+j}, v{aR(b)+e}, v{s_}')
            for j in range(4):
                e = e0+j; c, s_ = ws[j]
                if conj:
                    a(f'v_fma_f32 v{aR(b)+e}, v{aR(b)+e}, v{c}, v{8+j}\nv_fma_f32 v{aI(b)+e}, v{aI(b)+e}, v{c}, -v{12+j}')
                else:
                    a(f'v_fma_f32 v{aR(b)+e}, v{aR(b)+e}, v{c}, -v{8+j}\nv_fma_f32 v{aI(b)+e}, v{aI(b)+e}, v{c}, v{12+j}')
        for k in range(8):
            r_, i_ = aR(b)+2*k, aI(b)+2*k
            a(f'v_cvt_pk_bf16_f32 v{pk(0,b)+k}, v{r_}, v{r_+1}\nv_cvt_pk_bf16_f32 v{pk(1,b)+k}, v{i_}, v{i_+1}')
            if neg is not None:
                q = r_ if neg == 'r' else i_
                a(f'v_cvt_pk_bf16_f32 v{pk(2,b)+k}, -v{q}, -v{q+1}')
    V4 = lambda r: vr(r, 4)
    a.stamp(1)
    a('s_waitcnt vmcnt(8)')
    a.stamp(2)
    for b in range(2):
        mm(aR(b), [(aXr(b,t), ar(aC1+4*t,4)) for t in range(2)]+[(aXi(b,t), ar(aS1+4*t,4)) for t in range(2)])
        mm(aI(b), [(aXi(b,t), ar(aC1+4*t,4)) for t in range(2)]+[(aXr(b,t), ar(aN1+4*t,4)) for t in range(2)])
    a('s_nop 7')
    for b in range(2):
        if b: a('s_nop 3')
        cmul(b, lambda e, j: tw(b, e), True, 'r')
    a('s_nop 1')
    ST4 = [(bp, t) for bp in range(2) for t in range(2)]
    for b in range(2):
        mm(aR(b), [(c2(aC2,b,bp,t), V4(pk(0,bp,t))) for bp, t in ST4]+[(c2(aS2,b,bp,t), V4(pk(1,bp,t))) for bp, t in ST4])
        mm(aI(b), [(c2(aC2,b,bp,t), V4(pk(1,bp,t))) for bp, t in ST4]+[(c2(aS2,b,bp,t), V4(pk(2,bp,t))) for bp, t in ST4])
    a.stamp(3)
    a('s_waitcnt vmcnt(0)\ns_nop 7\ns_nop 3')
    for b in range(2):
        def gw(e, j):
            w = W+16*b+e; c, s_ = TW+32+j, TW+36+j
            a(f'v_lshlrev_b32 v{c}, 16, v{w}\nv_and_b32 v{s_}, 0xffff0000, v{w}')
            return (c, s_)
        cmul(b, gw, False, 'i')
    a('s_nop 1')
    for b in range(2):
        mm(aR(b), [(V4(pk(0,bp,t)), c2(aC2,b,bp,t)) for bp, t in ST4]+[(V4(pk(2,bp,t)), c2(aS2,b,bp,t)) for bp, t in ST4])
        mm(aI(b), [(V4(pk(1,bp,t)), c2(aC2,b,bp,t)) for bp, t in ST4]+[(V4(pk(0,bp,t)), c2(aS2,b,bp,t)) for bp, t in ST4])
    a('s_nop 7\ns_nop 3')
    for b in range(2): cmul(b, lambda e, j: tw(2*b, e), False, None)
    a('s_nop 1')
    for b in range(2):
        mm(aR(b), [(ar(aC1+4*t,4), V4(pk(0,b,t))) for t in range(2)]+[(ar(aN1+4*t,4), V4(pk(1,b,t))) for t in range(2)])
        mm(aI(b), [(ar(aC1+4*t,4), V4(pk(1,b,t))) for t in range(2)]+[(ar(aS1+4*t,4), V4(pk(0,b,t))) for t in range(2)])
    a.stamp(4)
    a('''v_mul_u32_u24 v5, 4160, v4
    v_lshl_add_u32 v5, v3, 4, v5
    s_lshl_b32 s14, s3, 2
    v_add_u32 v5, s14, v5
    v_and_b32 v6, 31, v0
    v_mul_u32_u24 v6, 1040, v6
    v_lshrrev_b32 v7, 5, v0
    v_lshl_add_u32 v6, v7, 4, v6
    v_lshrrev_b32 v7, 4, v0
    v_mul_u32_u24 v7, 76800, v7
    v_and_b32 v8, 15, v0
    v_lshl_add_u32 v7, v8, 4, v7
    s_lshl_b32 s14, s12, 8
    s_add_u32 s14, s14, 55296''')
    for b in range(2):
        if b: a('s_nop 7')
        for e in range(16):
            a(f'v_cvt_pk_bf16_f32 v{PK+16*b+e}, v{aR(b)+e}, v{aI(b)+e}')
        for e in range(16):
            a(f'ds_write_b32 v5, v{PK+16*b+e} offset:{(R(e)*65+32*b)*16}')
    a('s_waitcnt lgkmcnt(0)\ns_barrier')
    a.stamp(5)
    for r in range(8): a(f'ds_read_b128 {vr(16+4*r,4)}, v6 offset:{r*128}')
    a('s_mov_b32 s15, s14')
    for r in range(8):
        a(f's_waitcnt lgkmcnt({7-r})\nbuffer_store_dwordx4 {vr(16+4*r,4)}, v7, s[28:31], s15 offen {ST}\ns_add_u32 s15, s15, {16*76800}')
    a('s_cmp_lg_u32 s12, 80\ns_cbranch_scc1 K2_FEND')
    for k in range(4): a(f'v_mov_b32 v{60+k}, 0')
    for r in range(8):
        for q in range(1, 4): a(f'buffer_store_dwordx4 v[60:63], v7, s[28:31], s14 offen offset:{q*256} {ST}')
        a(f's_add_u32 s14, s14, {16*76800}')
    a('K2_FEND:')
    a.end()

def gen_side(a, ST):
    a('''s_sub_u32 s12, s2, 225
    s_mul_i32 s13, s12, 81920
    s_mul_i32 s14, s3, 20480
    s_add_u32 s13, s13, s14
    v_lshlrev_b32 v3, 4, v2
    s_waitcnt lgkmcnt(0)''')
    a.srd(16, 8, 1728*1280); a.srd(20, 10, BF_SZ, BF_OFF)
    for p in range(5):
        a(f's_add_u32 m0, s14, {p*4096}\ns_add_u32 s15, s13, {p*4096}')
        for k in range(4): a(f'buffer_load_dwordx4 v3, s[16:19], s15 offen offset:{k*1024} lds')
    sc = 1.0/(320*2048)
    a(f'''s_lshl_b32 s24, s12, 2
    s_add_u32 s24, s24, s3
    s_cmp_ge_u32 s24, 105
    s_cbranch_scc1 K2_S_NOTG
    s_mul_i32 s25, s24, 52429
    s_lshr_b32 s25, s25, 18
    s_mul_i32 s26, s25, 5
    s_sub_u32 s26, s24, s26
    v_and_b32 v4, 15, v2
    v_lshrrev_b32 v5, 4, v2
    v_lshrrev_b32 v6, 2, v4
    v_mul_u32_u24 v6, 20, v6
    v_and_b32 v4, 3, v4
    v_add_u32 v4, v4, v6
    s_lshl_b32 s27, s26, 2
    v_add_u32 v4, s27, v4
    v_cvt_f32_u32 v4, v4
    s_lshl_b32 s27, s25, 4
    v_lshl_add_u32 v5, v5, 2, s27
    v_mov_b32 v7, {fx(sc)}
    v_mov_b32 v8, {fx(sc/2)}
    v_mov_b32 v9, {fx(-sc)}
    s_mul_i32 s27, s26, 76800
    s_add_u32 s25, s25, 54
    s_lshl_b32 s25, s25, 10
    s_add_u32 s27, s27, s25''')
    for cc in range(4):
        a(f'''v_add_u32 v6, {cc}, v5
        v_cvt_f32_u32 v{16+cc}, v6
        v_cmp_eq_u32 vcc, 0, v6
        v_cmp_le_u32 s[28:29], v10, v6
        v_cmp_lt_u32 s[30:31], v10, v6
        s_or_b64 s[28:29], s[28:29], vcc
        s_nop 1
        v_cndmask_b32 v{20+cc}, v7, v8, s[28:29]
        v_cndmask_b32 v{24+cc}, v9, 0, s[28:29]
        v_cndmask_b32 v{20+cc}, v{20+cc}, 0, s[30:31]'''.replace('v_add_u32 v6', 'v_mov_b32 v10, 320\nv_add_u32 v6'))
    for nt in range(8):
        a(f'v_add_f32 v11, {fx(80.0*nt)}, v4')
        for cc in range(4): a(f'v_mul_f32 v{28+cc}, v11, v{16+cc}')
        for cc in range(4): a(f'v_mul_f32 v{28+cc}, {fx(1/640)}, v{28+cc}')
        for cc in range(4): a(f'v_fract_f32 v{28+cc}, v{28+cc}')
        for cc in range(4): a(f'v_cos_f32 v{32+cc}, v{28+cc}\nv_sin_f32 v{36+cc}, v{28+cc}')
        for cc in range(4): a(f'v_mul_f32 v{32+cc}, v{32+cc}, v{20+cc}\nv_mul_f32 v{36+cc}, v{36+cc}, v{24+cc}')
        o = 40+4*nt
        for cc in range(4): a(f'v_cvt_pk_bf16_f32 v{o+cc}, v{32+cc}, v{36+cc}')
        a(f'buffer_store_dwordx4 {vr(o,4)}, v3, s[20:23], s27 offen {ST}\ns_add_u32 s27, s27, {5*76800}')
    a('''K2_S_NOTG:
    v_bfe_u32 v4, v2, 4, 1
    v_lshrrev_b32 v5, 5, v2
    v_bfe_u32 v6, v2, 2, 2
    v_and_b32 v7, 3, v2
    v_lshl_add_u32 v6, v5, 2, v6
    v_lshl_add_u32 v6, v4, 4, v6
    v_mul_u32_u24 v6, 1280, v6
    v_mul_u32_u24 v7, 40, v7
    s_mul_i32 s14, s3, 320
    v_add3_u32 v6, v6, v7, s14
    v_add_u32 v7, 40960, v6
    s_mul_i32 s15, s3, 768000
    s_lshl_b32 s13, s12, 11
    s_add_u32 s15, s15, s13
    s_waitcnt vmcnt(0)
    s_barrier''')
    a.stamp(2)
    for ks in range(2):
        for nb in range(10):
            o = 80+40*ks+4*nb
            off = (nb//5)*160+(nb % 5)*8
            for u in range(2): a(f'ds_read_b64_tr_b16 {vr(o+2*u,2)}, v{6+ks} offset:{off+u*10240}')
        a('s_waitcnt lgkmcnt(0)')
        for nb in range(10):
            o = 80+40*ks+4*nb
            a(f's_add_u32 s13, s15, {nb*76800+ks*1024}\nbuffer_store_dwordx4 {vr(o,4)}, v3, s[20:23], s13 offen {ST}')
    a.end()

def gen_k2(a, ST=''):
    header(a, 'k2_kernel')
    a('''s_cmp_ge_u32 s2, 252
    s_cbranch_scc1 K2_END
    s_load_dwordx4 s[4:7], s[0:1], 32
    s_load_dwordx2 s[8:9], s[0:1], 48
    s_load_dwordx2 s[10:11], s[0:1], 80
    v_lshrrev_b32 v1, 6, v0
    v_and_b32 v2, 63, v0
    v_readfirstlane_b32 s3, v1
    s_cmp_ge_u32 s2, 225
    s_cbranch_scc1 K2_SIDE
    s_cmp_ge_u32 s2, 144
    s_cbranch_scc1 K2_FFT''')
    gen_gemm1(a, ST)
    a('K2_FFT:'); gen_fft(a, ST)
    a('K2_SIDE:'); gen_side(a, ST)
    a('K2_END:\ns_endpgm')
    return descriptor('k2_kernel', 256+120, 256)
```

```python
from common import *
def gen_k3(a, NS=6):
    header(a, 'k3_kernel')
    a('''s_cmp_ge_u32 s2, 256
    s_cbranch_scc1 K3_END
    s_load_dwordx2 s[4:5], s[0:1], 0
    s_load_dwordx4 s[8:11], s[0:1], 56
    s_load_dwordx2 s[6:7], s[0:1], 80
    v_lshrrev_b32 v1, 6, v0
    v_and_b32 v2, 63, v0
    v_readfirstlane_b32 s3, v1
    s_and_b32 s12, s2, 7
    s_lshr_b32 s13, s2, 3
    s_lshr_b32 s14, s12, 1
    s_lshl_b32 s14, s14, 3
    s_lshr_b32 s15, s13, 2
    s_add_u32 s14, s14, s15
    s_and_b32 s12, s12, 1
    s_lshl_b32 s12, s12, 2
    s_and_b32 s13, s13, 3
    s_add_u32 s15, s12, s13
    v_lshlrev_b32 v3, 4, v2''')
    for k in range(4):
        a(f'''s_add_u32 s12, s3, {k}
        s_and_b32 s12, s12, 3
        s_lshl_b32 s13, s14, 2
        s_add_u32 s12, s12, s13
        s_mul_i32 s12, s12, 76800
        v_add_u32 v{4+k}, s12, v3''')
    a('s_mul_i32 s12, s15, 384000')
    for k in range(5):
        a(f'v_add_u32 v{8+k}, s12, v3')
        if k < 4: a('s_add_u32 s12, s12, 76800')
    a('s_lshl_b32 s32, s3, 10\ns_waitcnt lgkmcnt(0)')
    a.srd(16, 6, AF_SZ, AF_OFF); a.srd(20, 6, BF_SZ, BF_OFF)
    def loads(i):
        sl = (i % NS)*36; out = []
        sb = 's32'
        pre = ''
        if i == 18:
            pre = f's_cmp_eq_u32 s3, 3\ns_cselect_b32 s33, {OOB}, s32\n'; sb = 's33'
        for k in range(5): out.append((pre if k == 0 else '')+f'buffer_load_dwordx4 {ar(sl+16+4*k,4)}, v{8+k}, s[20:23], {sb} offen')
        for k in range(4): out.append(f'buffer_load_dwordx4 {ar(sl+4*k,4)}, v{4+k}, s[16:19], s32 offen'+('\ns_add_u32 s32, s32, 4096' if k == 3 else ''))
        return out
    for i in range(NS):
        for x in loads(i): a(x)
    a.stamp(1)
    a.srd(24, 4, 2048*1280); a.srd(28, 8, 1280); a.srd(36, 10, 2048*1280)
    a('''s_lshl_b32 s12, s14, 2
    s_add_u32 s12, s12, s3
    s_lshl_b32 s12, s12, 4
    v_and_b32 v13, 15, v2
    v_add_u32 v13, s12, v13
    v_lshrrev_b32 v14, 5, v13
    v_and_b32 v13, 31, v13
    v_lshl_add_u32 v13, v13, 6, v14
    v_mul_u32_u24 v13, 1280, v13
    v_lshrrev_b32 v14, 4, v2
    v_mul_u32_u24 v14, 40, v14
    s_mul_i32 s12, s15, 160
    v_add_u32 v14, s12, v14
    v_add_u32 v13, v13, v14''')
    AC = 16; XR = 96; BR = 108
    acc = lambda sa, blk: AC+20*sa+4*blk
    for i in range(19):
        sl = (i % NS)*36
        issued = min(18, i+NS-1)
        extra = 6 if i > 19-NS-1+0 and i >= 19-NS else 0
        a(f's_waitcnt vmcnt({9*(issued-i)+(6 if i >= 19-NS+1 else 0)})')
        if i in (0, 6, 12): a.stamp(2+i//6)
        m = [f'v_mfma_f32_16x16x32_bf16 {vr(acc(sa,blk),4)}, {ar(sl+16+4*blk,4)}, {ar(sl+4*sa,4)}, {vr(acc(sa,blk),4) if i else 0}' for blk in range(5) for sa in range(4)]
        for x in m: a(x)
        if i+NS <= 18:
            for x in loads(i+NS): a(x)
        if i == 19-NS:
            a(f'''buffer_load_dwordx4 {vr(XR,4)}, v13, s[24:27], 0 offen
            buffer_load_dwordx4 {vr(XR+4,4)}, v13, s[24:27], 0 offen offset:16
            buffer_load_dwordx2 {vr(XR+8,2)}, v13, s[24:27], 0 offen offset:32
            buffer_load_dwordx4 {vr(BR,4)}, v14, s[28:31], 0 offen
            buffer_load_dwordx4 {vr(BR+4,4)}, v14, s[28:31], 0 offen offset:16
            buffer_load_dwordx2 {vr(BR+8,2)}, v14, s[28:31], 0 offen offset:32''')
    a.stamp(5)
    for k in range(1, 4):
        a(f'''s_add_u32 s12, s3, {k}
        s_and_b32 s12, s12, 3
        s_mul_i32 s12, s12, 15360
        s_add_u32 s12, s12, {(k-1)*5120}
        v_add_u32 v{4+k}, s12, v3''')
    a('s_mul_i32 s12, s3, 15360\nv_add_u32 v4, s12, v3')
    for k in range(1, 4):
        for blk in range(5): a(f'ds_write_b128 v{4+k}, {vr(acc(k,blk),4)} offset:{blk*1024}')
    a('s_waitcnt vmcnt(0)')
    for j in range(10):
        a(f'''v_lshlrev_b32 v{120+2*j}, 16, v{XR+j}
        v_and_b32 v{121+2*j}, 0xffff0000, v{XR+j}
        v_lshlrev_b32 v{140+2*j}, 16, v{BR+j}
        v_and_b32 v{141+2*j}, 0xffff0000, v{BR+j}
        v_pk_add_f32 {vr(AC+2*j,2)}, {vr(AC+2*j,2)}, {vr(120+2*j,2)}
        v_pk_add_f32 {vr(AC+2*j,2)}, {vr(AC+2*j,2)}, {vr(140+2*j,2)}''')
    a('s_waitcnt lgkmcnt(0)\ns_barrier')
    a.stamp(6)
    for k in range(3):
        for blk in range(5): a(f'ds_read_b128 {vr(120+20*k+4*blk,4)}, v4 offset:{k*5120+blk*1024}')
    for k in range(3):
        a(f's_waitcnt lgkmcnt({10-5*k})')
        for j in range(10): a(f'v_pk_add_f32 {vr(AC+2*j,2)}, {vr(AC+2*j,2)}, {vr(120+20*k+2*j,2)}')
    for j in range(10): a(f'v_cvt_pk_bf16_f32 v{XR+j}, v{AC+2*j}, v{AC+2*j+1}')
    a(f'''buffer_store_dwordx4 {vr(XR,4)}, v13, s[36:39], 0 offen
    buffer_store_dwordx4 {vr(XR+4,4)}, v13, s[36:39], 0 offen offset:16
    buffer_store_dwordx2 {vr(XR+8,2)}, v13, s[36:39], 0 offen offset:32''')
    a.end()
    a('K3_END:\ns_endpgm')
    return descriptor('k3_kernel', 256+36*NS, 256)
```

```python
import sys
from common import *
from k1 import gen_k1
from k2 import gen_k2
from k3 import gen_k3
NAME = 'parallel_sum__spectral_gfnet__mixer_channel_mlp__prompt'
def build(opts):
    ref = open(f'cdna_kernels/{NAME}.s.ref').read().split('\n')
    hdr = [l for l in ref if l.startswith(';') and '@launch' not in l and 'Override' not in l and 'grid=ceil' not in l][:13]
    hdr += ['; @launch kernel=k1_kernel grid=(416,1,1) block=(256,1,1) lds=40960',
            '; @launch kernel=k2_kernel grid=(252,1,1) block=(256,1,1) lds=163840',
            f'; @launch kernel=k3_kernel grid=(256,1,1) block=(256,1,1) lds={opts.get("lds3", 90112)}']
    a = Asm(); a.diag = bool(opts.get('diag'))
    a('.amdgcn_target "amdgcn-amd-amdhsa--gfx950"\n.text')
    d = gen_k1(a, opts.get('st1', '')) + gen_k2(a, opts.get('st2', '')) + gen_k3(a, int(opts.get('ns', 6)))
    out = '\n'.join(hdr) + '\n' + a.text() + '.section .rodata,"a"\n'
    for blk in d.split('.end_amdhsa_kernel\n')[:-1]:
        out += '.p2align 6\n' + blk + '.end_amdhsa_kernel\n'
    return out
if __name__ == '__main__':
    opts = dict(x.split('=') for x in sys.argv[2:])
    opts = {k: v.replace('+', ' ') for k, v in opts.items()}
    path = sys.argv[1] if len(sys.argv) > 1 and sys.argv[1] != '-' else f'cdna_kernels/{NAME}.s'
    open(path, 'w').write(build(opts))
```

```python
from common import *
def gen_k1(a, ST=''):
    header(a, 'k1_kernel')
    PF = int(a.opts.get('pf', 0)); NPF = int(a.opts.get('npf', 32)); CH = -(-2160//(4*NPF))
    a(f'''s_cmp_ge_u32 s2, {352+NPF}
    s_cbranch_scc1 K1_END
    s_load_dwordx4 s[4:7], s[0:1], 0
    s_load_dwordx2 s[8:9], s[0:1], 16
    s_load_dwordx2 s[10:11], s[0:1], 80
    v_lshrrev_b32 v1, 6, v0
    v_and_b32 v2, 63, v0
    v_readfirstlane_b32 s3, v1''')
    a.cpf('k1_kernel', 'K1_END', 1, vt=232, dst=20)
    a('''s_cmp_ge_u32 s2, 256
    s_cbranch_scc1 K1_TR''')
    a('''s_and_b32 s12, s2, 7
    s_lshl_b32 s12, s12, 3
    s_lshr_b32 s13, s2, 3
    s_and_b32 s15, s13, 7
    s_add_u32 s12, s12, s15
    s_lshr_b32 s13, s13, 3
    v_lshrrev_b32 v3, 3, v0
    v_and_b32 v4, 7, v0
    v_lshlrev_b32 v5, 6, v3
    v_add_u32 v5, s12, v5
    v_mul_u32_u24 v5, 1280, v5
    v_lshl_add_u32 v5, v4, 4, v5
    s_waitcnt lgkmcnt(0)''')
    a.srd(16, 4, 2048*1280)
    a.srd(20, 10, X1T_SZ, X1T_OFF)
    a.srd(24, 10, YF_SZ, YF_OFF)
    XF = 16
    TF = 96
    TM = 176
    D = 208
    for t in range(10):
        a(f'buffer_load_dwordx4 {vr(XF+8*t+4,4)}, v5, s[16:19], 0 offen offset:{t*128}')
    a('''s_lshr_b32 s14, s13, 1
    s_and_b32 s31, s13, 1
    s_mul_i32 s31, s31, 5
    v_lshrrev_b32 v11, 5, v2''')
    rb = [TM, TM+8, TM+16]
    TX = lambda t: 240+4*t if t < 4 else 204
    for ex in range(2):
        so = 9 if ex == 0 else 1
        a(f'''s_add_u32 s15, s31, {'4' if ex else 's3'}
        s_lshl_b32 s15, s15, 5
        v_and_b32 v6, 31, v2
        v_add_u32 v6, s15, v6
        v_and_b32 v7, 1, v6
        v_and_b32 v8, 0xfffffffe, v6
        v_add_u32 v8, s14, v8
        v_lshl_add_u32 v{so}, v8, 1, v7
        v_cmp_eq_u32 vcc, 1, v{so}
        v_mov_b32 v10, 320
        s_lshl_b32 s15, s12, 6
        v_cndmask_b32 v8, v8, v10, vcc
        v_cndmask_b32 v7, v7, 0, vcc
        v_lshl_add_u32 v{so}, v8, 1, v7
        v_lshlrev_b32 v{so}, 12, v{so}
        v_lshl_add_u32 v{so}, v11, 5, v{so}
        v_add_u32 v{so}, s15, v{so}
        v_cvt_f32_u32 v8, v8
        v_cvt_f32_u32 v7, v7
        v_lshlrev_b32 v10, 3, v11''')
        if ex: a('s_mul_i32 s15, s3, 80\nv_add_u32 v10, s15, v10\ns_lshl_b32 s15, s3, 3\nv_add_u32 v1, s15, v1')
        a(f'''v_cvt_f32_u32 v10, v10
        v_mul_f32 v8, {fx(1/640)}, v8
        v_mul_f32 v7, {fx(0.25)}, v7
        v_fmac_f32 v7, v10, v8''')
        a(f'v_mul_f32 v{D}, {fx(16.0)}, v8')
        for t in range(2):
            for j in range(8): a(f'v_fmamk_f32 v{rb[t]+j}, v8, {fx(float(16*t+j))}, v7')
        a(f'v_cos_f32 v{D}, v{D}')
        for t in range(2):
            for j in range(8): a(f'v_cos_f32 v{rb[t]+j}, v{rb[t]+j}')
        a(f'v_add_f32 v{D}, v{D}, v{D}')
        for t in range(5 if ex else 20):
            if t >= 2:
                for j in range(8): a(f'v_fma_f32 v{rb[t%3]+j}, v{D}, v{rb[(t-1)%3]+j}, -v{rb[(t-2)%3]+j}')
            for j in range(4): a(f'v_cvt_pk_bf16_f32 v{(TX(t) if ex else TF+4*t)+j}, v{rb[t%3]+2*j}, v{rb[t%3]+2*j+1}')
    a.stamp(1)
    a('v_and_b32 v6, 31, v2')
    for e in range(4):
        a(f'''v_add_u32 v10, {2*e}, v11
        v_xor_b32 v10, v10, v6
        v_lshlrev_b32 v10, 4, v10
        v_lshl_add_u32 v10, v11, 9, v10
        v_add_u32 v{12+e}, {e*1024}, v10''')
    for t in range(10):
        a(f's_waitcnt vmcnt({9-t})')
        for k in range(4):
            src = XF+8*t+4+k
            a(f'v_lshlrev_b32 v{XF+8*t+2*k}, 16, v{src}\nv_and_b32 v{XF+8*t+2*k+1}, 0xffff0000, v{src}')
    a.stamp(2)
    P = lambda i: vr(XF+2*i, 2)
    for k in range(4): a(f'v_pk_add_f32 {vr(TM+2*k,2)}, {P(k)}, {P(k+4)}')
    for i in range(8, 40): a(f'v_pk_add_f32 {vr(TM+2*(i%4),2)}, {vr(TM+2*(i%4),2)}, {P(i)}')
    def red(dst):
        a(f'''v_pk_add_f32 {vr(TM,2)}, {vr(TM,2)}, {vr(TM+2,2)}
        v_pk_add_f32 {vr(TM+4,2)}, {vr(TM+4,2)}, {vr(TM+6,2)}
        s_nop 0
        v_pk_add_f32 {vr(TM,2)}, {vr(TM,2)}, {vr(TM+4,2)}
        s_nop 0
        v_add_f32 v{TM}, v{TM}, v{TM+1}
        s_nop 1
        v_add_f32_dpp v{TM+1}, v{TM}, v{TM} quad_perm:[1,0,3,2] row_mask:0xf bank_mask:0xf
        s_nop 1
        v_add_f32_dpp v{TM}, v{TM+1}, v{TM+1} quad_perm:[2,3,0,1] row_mask:0xf bank_mask:0xf
        s_nop 1
        v_add_f32_dpp v{TM+1}, v{TM}, v{TM} row_half_mirror row_mask:0xf bank_mask:0xf
        v_mul_f32 v{dst}, {fx(1/640)}, v{TM+1}''')
    M = TM+8
    red(M+2)
    a(f'v_sub_f32 v{M}, 0, v{M+2}\nv_sub_f32 v{M+1}, 0, v{M+2}')
    for i in range(40):
        d = vr(D+2*(i % 8), 2)
        a(f'v_pk_add_f32 {d}, {P(i)}, {vr(M,2)}')
        if i >= 4:
            k = i-4; dk = vr(D+2*(k % 8), 2); acc = vr(TM+2*(k % 4), 2)
            a(f'v_pk_mul_f32 {acc}, {dk}, {dk}' if k < 4 else f'v_pk_fma_f32 {acc}, {dk}, {dk}, {acc}')
    for k in range(36, 40):
        dk = vr(D+2*(k % 8), 2); acc = vr(TM+2*(k % 4), 2)
        a(f'v_pk_fma_f32 {acc}, {dk}, {dk}, {acc}')
    red(M+3)
    def rbf(dst, src):
        a(f'v_cvt_pk_bf16_f32 v{dst}, v{src}, v{src}\nv_and_b32 v{dst}, 0xffff0000, v{dst}')
    def rstd(dst, var):
        rbf(dst, var)
        a(f'v_add_f32 v{dst}, {fx(1e-5)}, v{dst}')
        rbf(dst, dst)
        a(f'v_sqrt_f32 v{dst}, v{dst}\ns_nop 0')
        rbf(dst, dst)
        a(f'v_rcp_f32 v{dst}, v{dst}\ns_nop 0')
    MB, R, OF, SG, M2, V2, R2, YA, YB = M+4, M+6, M+8, M+10, M+12, M+13, M+14, M+16, M+18
    rbf(MB, M+2); rstd(R, M+3)
    a(f'''v_mov_b32 v{R+1}, v{R}
    v_mul_f32 v{OF}, v{MB}, v{R}
    v_sub_f32 v{M2}, v{M+2}, v{MB}
    v_mul_f32 v{M2}, v{M2}, v{R}
    v_mul_f32 v{V2}, v{M+3}, v{R}
    v_mul_f32 v{V2}, v{V2}, v{R}
    v_mov_b32 v{YB}, v{OF}
    s_cmp_eq_u32 s14, 0
    s_cselect_b32 s28, -2.0, 0
    s_cselect_b32 s30, 1.0, -1.0
    s_mov_b32 s31, s30
    v_mul_f32 v{OF}, s28, v{OF}
    v_mov_b32 v{OF+1}, v{OF}
    v_lshlrev_b32 v10, 9, v4
    v_xor_b32 v6, v3, v4
    v_lshl_add_u32 v6, v6, 4, v10''')
    for t in range(5):
        b = D+16*(t % 2)
        for k in range(4): a(f'v_pk_fma_f32 {vr(b+2*k,2)}, {P(4*t+k+20)}, s[30:31], {P(4*t+k)}')
        for k in range(4): a(f'v_pk_fma_f32 {vr(b+2*k,2)}, {vr(b+2*k,2)}, {vr(R,2)}, {vr(OF,2)}')
        for k in range(4): a(f'v_cvt_pk_bf16_f32 v{b+8+k}, v{b+2*k}, v{b+2*k+1}')
        a(f'ds_write_b128 v6, {vr(b+8,4)} offset:{t*4096}')
    rbf(M2, M2); rstd(R2, V2)
    a(f'''v_add_f32 v{YB}, v{YB}, v{M2}
    v_mul_f32 v{YA}, v{R}, v{R2}
    v_mul_f32 v{YB}, v{YB}, v{R2}
    v_mov_b32 v{YA+1}, v{YA}
    v_sub_f32 v{YB}, 0, v{YB}
    v_lshl_add_u32 v10, v3, 4, v10
    v_mov_b32 v{YB+1}, v{YB}
    s_mul_i32 s15, s12, 40960''')
    for nt, ch in enumerate([(0, 1, 2), (3, 4, 5), (6, 7), (8, 9)]):
        if nt < 3: a(f's_cmp_lg_u32 s13, {nt}\ns_cbranch_scc1 K1_Y{nt+1}')
        for n, t in enumerate(ch):
            for k in range(4): a(f'v_pk_fma_f32 {vr(D+8*n+2*k,2)}, {P(4*t+k)}, {vr(YA,2)}, {vr(YB,2)}')
        a(f's_add_u32 s15, s15, {ch[0]*4096}')
        for n, t in enumerate(ch):
            for k in range(4): a(f'v_cvt_pk_bf16_f32 v{D+8*n+k}, v{D+8*n+2*k}, v{D+8*n+2*k+1}')
            a(f'buffer_store_dwordx4 {vr(D+8*n,4)}, v10, s[24:27], s15 offen {a.opts.get("sty", "")}')
            if n < len(ch)-1: a('s_add_u32 s15, s15, 4096')
        if nt < 3: a(f's_branch K1_YS\nK1_Y{nt+1}:')
    a('K1_YS:')
    a('v_and_b32 v6, 31, v2\ns_mul_i32 s28, s3, 5')
    for j in range(5):
        a(f'''s_and_b32 s29, s28, 3
        s_lshl_b32 s30, s29, 1
        v_add_u32 v7, s30, v11
        v_xor_b32 v7, v7, v6
        v_lshlrev_b32 v7, 4, v7
        v_lshl_add_u32 v7, v11, 9, v7
        s_lshl_b32 s30, s28, 10
        v_add_u32 v{TM+j}, s30, v7
        s_add_u32 s28, s28, 1''')
    a(f'''v_lshlrev_b32 v7, 4, v2
    s_lshl_b32 s28, s3, 10
    s_add_u32 s28, s28, 20480
    v_add_u32 v{TM+5}, s28, v7
    s_lshl_b32 s28, s3, 12
    s_add_u32 s28, s28, 20480
    v_add_u32 v{TM+6}, s28, v7''')
    a.stamp(3)
    a('s_waitcnt lgkmcnt(0)\ns_barrier')
    a.stamp(4)
    XE = TM+8; AC = D; AE = D+16
    for j in range(5): a(f'ds_read_b128 {vr(XE+4*j,4)}, v{TM+j}')
    for ks in range(20): a(f'ds_read_b128 {vr(XF+4*ks,4)}, v{12+ks%4} offset:{(ks//4)*4096}')
    a('s_waitcnt lgkmcnt(15)')
    for ks in range(20):
        if ks >= 5: a(f's_waitcnt lgkmcnt({19-ks+max(0, min(ks-9, 4))})')
        if ks < 5: a(f'v_mfma_f32_32x32x16_bf16 {vr(AE,16)}, {vr(XE+4*ks,4)}, {vr(TX(ks),4)}, {vr(AE,16) if ks else 0}')
        a(f'v_mfma_f32_32x32x16_bf16 {vr(AC,16)}, {vr(XF+4*ks,4)}, {vr(TF+4*ks,4)}, {vr(AC,16) if ks else 0}')
        if 9 <= ks < 13: a(f'ds_write_b128 v{TM+5}, {vr(AE+4*(ks-9),4)} offset:{(ks-9)*4096}')
    a('s_waitcnt lgkmcnt(0)\ns_barrier')
    for k in range(4): a(f'ds_read_b128 {vr(XE+4*k,4)}, v{TM+6} offset:{k*1024}')
    a('s_nop 7')
    a.stamp(5)
    for k in range(8): a(f'v_cvt_pk_bf16_f32 v{XF+k}, v{AC+2*k}, v{AC+2*k+1}')
    a(f'''buffer_store_dwordx4 {vr(XF,4)}, v9, s[20:23], 0 offen {ST}
    buffer_store_dwordx4 {vr(XF+4,4)}, v9, s[20:23], 0 offen offset:16 {ST}
    s_waitcnt lgkmcnt(0)''')
    for k in range(2): a(f'v_pk_add_f32 {vr(XE+2*k,2)}, {vr(XE+2*k,2)}, {vr(XE+4+2*k,2)}\nv_pk_add_f32 {vr(XE+8+2*k,2)}, {vr(XE+8+2*k,2)}, {vr(XE+12+2*k,2)}')
    for k in range(2): a(f'v_pk_add_f32 {vr(XE+2*k,2)}, {vr(XE+2*k,2)}, {vr(XE+8+2*k,2)}')
    a(f'''s_nop 0
    v_cvt_pk_bf16_f32 v{XE+4}, v{XE}, v{XE+1}
    v_cvt_pk_bf16_f32 v{XE+5}, v{XE+2}, v{XE+3}
    buffer_store_dwordx2 {vr(XE+4,2)}, v1, s[20:23], 0 offen {ST}''')
    a.end()
    a('K1_TR:')
    if PF: a('s_cmp_ge_u32 s2, 352\ns_cbranch_scc1 K1_PF')
    a('''s_sub_u32 s12, s2, 256
    s_and_b32 s13, s12, 15
    s_lshr_b32 s12, s12, 4
    s_mul_i32 s12, s12, 54
    v_add_u32 v3, s12, v2
    v_lshlrev_b32 v3, 1, v3
    s_lshl_b32 s14, s13, 4
    s_add_u32 s14, s14, s3
    s_mul_i32 s14, s14, 5136
    s_waitcnt lgkmcnt(0)''')
    a.srd(16, 6, 2048*642); a.srd(20, 8, 2048*642); a.srd(24, 10, WT_SZ, WT_OFF)
    for k in range(8):
        for i in range(4):
            a(f'''s_add_u32 s15, s14, {(32*i+k)*642}
            buffer_load_ushort v{16+4*k+i}, v3, s[16:19], s15 offen
            buffer_load_ushort v{48+4*k+i}, v3, s[20:23], s15 offen''')
    a.stamp(1)
    a('''v_mul_u32_u24 v4, 528, v2
    s_lshl_b32 s15, s3, 7
    v_add_u32 v4, s15, v4
    v_lshrrev_b32 v7, 5, v0
    v_and_b32 v8, 31, v0
    v_mul_u32_u24 v5, 528, v7
    v_lshl_add_u32 v5, v8, 4, v5
    v_add_u32 v7, s12, v7
    v_lshlrev_b32 v6, 13, v7
    v_lshl_add_u32 v6, v8, 4, v6
    s_lshl_b32 s15, s13, 9''')
    for k in range(8):
        a(f's_waitcnt vmcnt({56-8*k})')
        for i in range(4): a(f'v_lshl_or_b32 v{16+4*k+i}, v{48+4*k+i}, 16, v{16+4*k+i}')
        a(f'ds_write_b128 v4, {vr(16+4*k,4)} offset:{k*16}')
    a.stamp(2)
    a('s_waitcnt lgkmcnt(0)\ns_barrier')
    a.stamp(3)
    for r in range(7): a(f'ds_read_b128 {vr(80+4*r,4)}, v5 offset:{r*8*528}')
    for r in range(7):
        a(f's_waitcnt lgkmcnt({6-r})\nbuffer_store_dwordx4 {vr(80+4*r,4)}, v6, s[24:27], s15 offen {a.opts.get("stt", "")}')
        if r < 6: a('s_add_u32 s15, s15, 0x10000')
    a.end()
    if PF:
        a(f'''K1_PF:
        s_load_dwordx2 s[24:25], s[0:1], 32
        s_load_dwordx2 s[26:27], s[0:1], 48
        s_sub_u32 s12, s2, 352
        s_lshl_b32 s12, s12, 2
        s_add_u32 s12, s12, s3
        s_mul_i32 s12, s12, {CH*1024}
        v_lshlrev_b32 v3, 4, v2
        s_waitcnt lgkmcnt(0)''')
        a.stamp(1)
        if a.opts.get('cpf') == '1': a.cpf('k2_kernel', 'K3_END', 2, vt=8)
        if a.diag: a('s_waitcnt vmcnt(0)')
        a.stamp(2)
        a.srd(16, 24, 640*3456); a.srd(20, 26, 640*3456)
        for k in range(CH):
            a(f'buffer_load_dwordx4 {vr(16+4*k,4)}, v3, s[16:19], s12 offen')
            if PF > 1: a(f'buffer_load_dwordx4 {vr(96+4*k,4)}, v3, s[20:23], s12 offen')
            a('s_add_u32 s12, s12, 1024')
        a('s_waitcnt vmcnt(0)')
        a.end()
    a('K1_END:\ns_endpgm')
    return descriptor('k1_kernel', 256, 256)
```

```python
from common import *
import math
def gen_gemm1(a, ST):
    if a.opts.get('xm'):
        a('''s_and_b32 s12, s2, 1
        s_mul_i32 s12, s12, 18
        s_lshr_b32 s13, s2, 3
        s_add_u32 s13, s13, s12
        s_and_b32 s14, s13, 3
        s_lshr_b32 s13, s13, 2
        s_and_b32 s12, s2, 6
        s_lshl_b32 s12, s12, 1
        s_add_u32 s12, s12, s14''')
    else:
        a('''s_and_b32 s12, s2, 7
        s_lshr_b32 s13, s2, 3
        s_and_b32 s14, s13, 1
        s_lshl_b32 s12, s12, 1
        s_add_u32 s12, s12, s14
        s_lshr_b32 s13, s13, 1''')
    a(f'''    s_and_b32 s14, s3, 1
    s_lshr_b32 s15, s3, 1
    v_lshrrev_b32 v3, 3, v2
    v_and_b32 v4, 7, v2
    v_lshlrev_b32 v5, 1, v3
    v_and_b32 v5, 4, v5
    v_xor_b32 v4, v4, v5
    v_mul_u32_u24 v3, {int(a.opts.get('wpitch', 3456))}, v3
    v_lshl_add_u32 v3, v4, 4, v3
    v_lshlrev_b32 v4, 4, v2
    v_lshrrev_b32 v5, 5, v2
    v_lshlrev_b32 v6, 3, v5
    s_mul_i32 s32, s3, 55296
    s_mul_i32 s33, s13, 384
    s_add_u32 s32, s32, s33
    s_lshl_b32 s34, s12, 2
    s_add_u32 s34, s34, s3
    s_mul_i32 s34, s34, 40960
    s_mul_i32 s35, s14, 192
    s_add_u32 s35, s35, s33
    s_lshl_b32 s36, s3, 11
    s_lshl_b32 s37, s3, 12
    s_add_u32 s37, s37, 24576
    s_waitcnt lgkmcnt(0)''')
    a.srd(16, 4, 640*3456); a.srd(20, 10, YF_SZ, YF_OFF); a.srd(24, 6, 3456); a.srd(28, 10, AF_SZ, AF_OFF)
    BI = 160
    for fb in range(3):
        for g in range(4):
            a(f'buffer_load_dwordx2 {vr(BI+8*fb+2*g,2)}, v6, s[24:27], s35 offen offset:{fb*64+g*16}')
    def dma(st):
        slot = (st % 4)*40960
        out = []
        for fp in range(3):
            for kk in range(2):
                out.append(f'''s_add_u32 m0, s36, {slot+fp*8192+kk*1024}
                s_add_u32 s38, s32, {st*64*3456+kk*8*3456+fp*128}
                buffer_load_dwordx4 v3, s[16:19], s38 offen lds''')
        out.append(f'''s_add_u32 m0, s37, {slot}
        s_add_u32 s38, s34, {st*4096}
        buffer_load_dwordx4 v4, s[20:23], s38 offen lds''')
        for ks in range(1, 4): out.append(f'buffer_load_dwordx4 v4, s[20:23], s38 offen offset:{ks*1024} lds')
        return out
    for st in range(2):
        for x in dma(st): a(x)
    CP = a.cpf('k2_kernel', 'K2_FFT', 1, vt=240)
    a.stamp(1)
    a('''v_bfe_u32 v7, v2, 2, 2
    v_and_b32 v8, 3, v2
    v_bfe_u32 v9, v2, 4, 1
    v_lshlrev_b32 v10, 10, v5
    v_lshl_add_u32 v10, v7, 7, v10
    v_lshl_add_u32 v10, v9, 5, v10
    v_lshl_add_u32 v10, v8, 3, v10
    v_lshrrev_b32 v7, 1, v7
    v_xor_b32 v7, s14, v7
    v_lshl_add_u32 v11, v7, 6, v10
    v_xor_b32 v12, 64, v11
    s_lshl_b32 s39, s14, 13
    s_lshl_b32 s40, s15, 13
    s_add_u32 s40, s40, 24576''')
    WA = 16
    for sl in range(4):
        a(f'''s_add_u32 s41, s39, {sl*40960}
        v_add_u32 v{WA+4*sl}, s41, v11
        s_add_u32 s41, s41, s39
        v_add_u32 v{WA+4*sl+1}, s41, v12
        s_add_u32 s41, s40, {sl*40960}
        v_add_u32 v{WA+4*sl+2}, s41, v4''')
    AC = 32
    FR = 128
    FB = [192, 212]
    acc = lambda fb, tb: AC+32*fb+16*tb
    a(f's_waitcnt vmcnt({20+CP})')
    for fb in range(3):
        for g in range(4):
            for p in range(2):
                src = BI+8*fb+2*g+p
                for tb in range(2):
                    d = acc(fb, tb)+4*g+2*p
                    a(f'v_lshlrev_b32 v{d}, 16, v{src}\nv_and_b32 v{d+1}, 0xffff0000, v{src}')
    def reads(st, ks, buf):
        sl = st % 4; b = FB[buf]; out = []
        for tb in range(2): out.append(f'ds_read_b128 {vr(b+12+4*tb,4)}, v{WA+4*sl+2} offset:{tb*4096+ks*1024}')
        for fb in range(3):
            reg = WA+4*sl+(1 if fb == 1 else 0); off = ks*2048+(8192 if fb == 2 else 0)
            for u in range(2): out.append(f'ds_read_b64_tr_b16 {vr(b+4*fb+2*u,2)}, v{reg} offset:{off+u*512}')
        return out
    def mf(buf):
        b = FB[buf]
        return [f'v_mfma_f32_32x32x16_bf16 {vr(acc(fb,tb),16)}, {vr(b+4*fb,4)}, {vr(b+12+4*tb,4)}, {vr(acc(fb,tb),16)}' for fb in range(3) for tb in range(2)]
    def weave(m, r, f):
        n = len(m); k = 0
        for i, x in enumerate(m):
            a(x)
            for y in r[3*i:3*i+3]: a(y)
            e = (len(f)*(i+1)+n-1)//n
            while k < e: a(f[k]); k += 1
    a(f's_waitcnt vmcnt({10+CP})\ns_barrier')
    a.stamp(2)
    for x in reads(0, 0, 0): a(x)
    buf = 0
    pend = dma(2)+dma(3)
    issued = {0: 10, 1: 10}
    order = [2]*10+[3]*10
    nq = 20
    def take(n):
        out = []
        for _ in range(n):
            if pend: out.append(pend.pop(0))
        return out
    total_issued = [20]
    def rd(ks, fb, d):
        reg = WA+4+(1 if fb == 1 else 0); off = ks*2048+(8192 if fb == 2 else 0)
        return [f'ds_read_b64_tr_b16 {vr(d+2*u,2)}, v{reg} offset:{off+u*512}' for u in range(2)]
    area = [lambda n: 232+4*n, lambda n: 176+4*n]
    for st in range(9):
        if st == 4: a.stamp(3)
        for ks in range(4):
            if ks < 3:
                a('s_waitcnt lgkmcnt(0)')
                f = take(int(a.opts.get('tk', 5)) if st == 0 else 3); total_issued[0] += len(f)
                weave(mf(buf), reads(st, ks+1, buf ^ 1), f)
            else:
                if st < 9:
                    a(f's_waitcnt lgkmcnt(0) vmcnt({total_issued[0]-10*(st+2)+(CP if st == 0 else 0)})\ns_barrier')
                    if st+4 <= 9: pend += dma(st+4)
                    m = mf(buf); r = reads(st+1, 0, buf ^ 1)
                    if st == 8:
                        r = [x for k in range(4) for x in rd(k, 0, area[0](k))+[f'ds_read_b128 {ar(8*k+4*tb,4)}, v{WA+6} offset:{tb*4096+k*1024}' for tb in range(2)]]
                    for x in r[:3]: a(x)
                    f = take(int(a.opts.get('tk', 5)) if st == 0 else 3); total_issued[0] += len(f)
                    weave(m, r[3:], f)
                else:
                    a('s_waitcnt lgkmcnt(0)')
                    weave(mf(buf), [], [])
            buf ^= 1
    assert not pend
    a.stamp(4)
    c0 = -2*math.log2(math.e)*math.sqrt(2/math.pi); c1 = c0*0.044715
    setup = f'''s_mov_b32 s42, {fx(c1)}
    s_mov_b32 s43, s42
    v_mov_b32 v8, {fx(c0)}
    v_mov_b32 v9, {fx(c0)}
    v_bfe_u32 v6, v2, 4, 1
    v_mul_u32_u24 v6, 76800, v6
    v_lshl_add_u32 v6, v5, 9, v6
    v_and_b32 v7, 15, v2
    v_lshl_add_u32 v6, v7, 4, v6
    s_lshl_b32 s38, s12, 1
    s_add_u32 s38, s38, s15
    s_mul_i32 s38, s38, 307200
    s_mul_i32 s39, s13, 6144
    s_mul_i32 s40, s14, 3072
    s_add_u32 s38, s38, s39
    s_add_u32 s38, s38, s40
    s_add_u32 s39, s38, 153600
'''.split('\n')
    T = 128
    def gelu(n):
        fb, tb = n//2, n % 2
        x = acc(fb, tb); t = T+16*(n % 2); o = 16+8*(n % 2) if fb == 2 else 248
        l = [f'v_pk_mul_f32 {vr(t+2*k,2)}, {vr(x+2*k,2)}, {vr(x+2*k,2)}' for k in range(8)]
        l += [f'v_pk_fma_f32 {vr(t+2*k,2)}, {vr(t+2*k,2)}, s[42:43], v[8:9]' for k in range(8)]
        l += [f'v_pk_mul_f32 {vr(t+2*k,2)}, {vr(t+2*k,2)}, {vr(x+2*k,2)}' for k in range(8)]
        l += [f'v_exp_f32 v{t+k}, v{t+k}' for k in range(16)]
        l += [f'v_pk_add_f32 {vr(t+2*k,2)}, {vr(t+2*k,2)}, 1.0 op_sel_hi:[1,0]' for k in range(8)]
        l += [f'v_rcp_f32 v{t+k}, v{t+k}' for k in range(16)]
        l += [f'v_pk_mul_f32 {vr(t+2*k,2)}, {vr(t+2*k,2)}, {vr(x+2*k,2)}' for k in range(8)]
        l += [f'v_cvt_pk_bf16_f32 v{o+k}, v{t+2*k}, v{t+2*k+1}' for k in range(8)]
        l += [f'buffer_store_dwordx4 {vr(o+4*tt,4)}, v6, s[28:31], s{38+tb} offen offset:{fb*1024+tt*256} {ST}' for tt in range(2)]
        return l
    for fb in range(3):
        a('s_waitcnt lgkmcnt(0)')
        m = [f'v_mfma_f32_32x32x16_bf16 {vr(acc(fb,tb),16)}, {vr(area[fb % 2](k),4)}, {ar(8*k+4*tb,4)}, {vr(acc(fb,tb),16)}' for k in range(4) for tb in range(2)]
        r = [x for k in range(4) for x in rd(k, fb+1, area[(fb+1) % 2](k))] if fb < 2 else []
        if fb == 0: weave(m, r, setup)
        else:
            weave(m[:3], [], [])
            g = gelu(2*fb-2)+gelu(2*fb-1)
            weave(m[3:], [], g[:40])
            for x in r+g[40:]: a(x)
    a('s_nop 7\ns_nop 7')
    for x in gelu(4)+gelu(5): a(x)
    a.stamp(5)
    a.end()

def gen_fft(a, ST):
    a.cpf('K2_FFT', 'K2_SIDE', 1, vt=250, dst=16)
    a(f'''s_sub_u32 s12, s2, 144
    s_lshl_b32 s13, s12, 2
    s_add_u32 s13, s13, s3
    s_lshl_b32 s14, s13, 13
    s_add_u32 s15, s14, 4096
    s_mov_b32 s33, s15
    s_cmp_eq_u32 s13, 0
    s_cselect_b32 s15, {OOB}, s15
    s_cmp_ge_u32 s13, 320
    s_cselect_b32 s15, {OOB}, s15
    v_and_b32 v3, 31, v2
    v_lshrrev_b32 v4, 5, v2
    v_lshlrev_b32 v5, 6, v3
    v_lshl_add_u32 v5, v4, 5, v5
    v_lshlrev_b32 v6, 4, v2
    s_waitcnt lgkmcnt(0)''')
    a.srd(16, 10, X1T_SZ, X1T_OFF); a.srd(20, 10, WT_SZ, WT_OFF); a.srd(28, 10, AF_SZ, AF_OFF)
    aXr = lambda b, t: ar(8*b+4*t, 4)
    aXi = lambda b, t: ar(16+8*b+4*t, 4)
    aC1, aS1, aN1, aC2, aS2 = 32, 40, 48, 56, 88
    c2 = lambda base, b, bp, t: ar(base+16*b+8*bp+4*t, 4)
    W = 16; ACC = 48; PK = 112; TW = 160
    for b in range(2):
        for t in range(2):
            a(f'buffer_load_dwordx4 {aXr(b,t)}, v5, s[16:19], s14 offen offset:{b*2048+t*16}')
            a(f'buffer_load_dwordx4 {aXi(b,t)}, v5, s[16:19], s15 offen offset:{b*2048+t*16}')
    a(f'''v_cvt_f32_u32 v7, v3
    v_lshlrev_b32 v8, 2, v4
    v_cvt_f32_u32 v8, v8
    v_and_b32 v15, 1, v2
    v_mul_u32_u24 v15, 0x8000, v15
    v_lshl_or_b32 v15, v15, 16, v15''')
    R = lambda e: 8*(e//4)+e % 4
    def angles(dst, scale, ladd=0.0, extra=None):
        a(f'v_add_f32 v9, {fx(ladd)}, v7\nv_mul_f32 v9, {fx(scale)}, v9\nv_mul_f32 v10, v9, v8')
        if extra: a(f'v_fmamk_f32 v10, v7, {fx(extra)}, v10')
        for e in range(16): a(f'v_fmamk_f32 v{dst+e}, v9, {fx(float(R(e)))}, v10')
    T0, T1, T2 = ACC, ACC+16, ACC+32
    P = PK
    angles(T0, 1/32)
    for e in range(16): a(f'v_cos_f32 v{T1+e}, v{T0+e}\nv_sin_f32 v{T2+e}, v{T0+e}')
    for k in range(8): a(f'v_cvt_pk_bf16_f32 v{P+k}, v{T1+2*k}, v{T1+2*k+1}\nv_cvt_pk_bf16_f32 v{P+8+k}, v{T2+2*k}, v{T2+2*k+1}\nv_cvt_pk_bf16_f32 v{P+16+k}, -v{T2+2*k}, -v{T2+2*k+1}')
    for k in range(24): a(f'v_accvgpr_write_b32 a{aC1+k}, v{P+k}')
    tw = lambda s, e: (TW+32*s+e, TW+32*s+16+e)
    for s_, (ladd, extra) in enumerate([(0.0, None), (0.0, 1/64), (32.0, None)]):
        angles(T0, 1/2048, ladd, extra)
        for e in range(16): a(f'v_cos_f32 v{tw(s_,e)[0]}, v{T0+e}\nv_sin_f32 v{tw(s_,e)[1]}, v{T0+e}')
    angles(T0, 1/64)
    for e in range(16): a(f'v_cos_f32 v{T1+e}, v{T0+e}\nv_sin_f32 v{T2+e}, v{T0+e}')
    for k in range(8): a(f'v_cvt_pk_bf16_f32 v{P+k}, v{T1+2*k}, v{T1+2*k+1}\nv_cvt_pk_bf16_f32 v{P+8+k}, v{T2+2*k}, v{T2+2*k+1}')
    for m, base in enumerate([aC2, aS2]):
        for k in range(8):
            s_ = P+8*m+k
            a(f'''v_xor_b32 v11, v15, v{s_}
            v_xor_b32 v12, 0x80000000, v{s_}
            v_accvgpr_write_b32 a{base+k}, v{s_}
            v_xor_b32 v13, 0x80000000, v11
            v_accvgpr_write_b32 a{base+8+k}, v11
            v_accvgpr_write_b32 a{base+16+k}, v12
            v_accvgpr_write_b32 a{base+24+k}, v13''')
    aR = lambda b: ACC+32*b
    aI = lambda b: ACC+32*b+16
    pk = lambda which, b, t=0: PK+16*which+8*b+4*t
    def mm(d, terms):
        for i, (x, y) in enumerate(terms):
            a(f'v_mfma_f32_32x32x16_bf16 {vr(d,16)}, {x}, {y}, {vr(d,16) if i else 0}')
    def cmul(b, getw, conj, neg):
        for e0 in range(0, 16, 4):
            ws = [getw(e0+j, j) for j in range(4)]
            for j in range(4):
                e = e0+j; c, s_ = ws[j]
                a(f'v_mul_f32 v{8+j}, v{aI(b)+e}, v{s_}\nv_mul_f32 v{12+j}, v{aR(b)+e}, v{s_}')
            for j in range(4):
                e = e0+j; c, s_ = ws[j]
                if conj:
                    a(f'v_fma_f32 v{aR(b)+e}, v{aR(b)+e}, v{c}, v{8+j}\nv_fma_f32 v{aI(b)+e}, v{aI(b)+e}, v{c}, -v{12+j}')
                else:
                    a(f'v_fma_f32 v{aR(b)+e}, v{aR(b)+e}, v{c}, -v{8+j}\nv_fma_f32 v{aI(b)+e}, v{aI(b)+e}, v{c}, v{12+j}')
        for k in range(8):
            r_, i_ = aR(b)+2*k, aI(b)+2*k
            a(f'v_cvt_pk_bf16_f32 v{pk(0,b)+k}, v{r_}, v{r_+1}\nv_cvt_pk_bf16_f32 v{pk(1,b)+k}, v{i_}, v{i_+1}')
            if neg is not None:
                q = r_ if neg == 'r' else i_
                a(f'v_cvt_pk_bf16_f32 v{pk(2,b)+k}, -v{q}, -v{q+1}')
    V4 = lambda r: vr(r, 4)
    for b in range(2):
        for g in range(4):
            a(f'buffer_load_dwordx4 {vr(W+16*b+4*g,4)}, v6, s[20:23], s{14 if b==0 else 33} offen offset:{g*1024}')
    a.stamp(1)
    a('s_waitcnt vmcnt(8)')
    a.stamp(2)
    for b in range(2):
        mm(aR(b), [(aXr(b,t), ar(aC1+4*t,4)) for t in range(2)]+[(aXi(b,t), ar(aS1+4*t,4)) for t in range(2)])
        mm(aI(b), [(aXi(b,t), ar(aC1+4*t,4)) for t in range(2)]+[(aXr(b,t), ar(aN1+4*t,4)) for t in range(2)])
    a('s_nop 7')
    for b in range(2):
        if b: a('s_nop 3')
        cmul(b, lambda e, j: tw(b, e), True, 'r')
    a('s_nop 1')
    ST4 = [(bp, t) for bp in range(2) for t in range(2)]
    for b in range(2):
        mm(aR(b), [(c2(aC2,b,bp,t), V4(pk(0,bp,t))) for bp, t in ST4]+[(c2(aS2,b,bp,t), V4(pk(1,bp,t))) for bp, t in ST4])
        mm(aI(b), [(c2(aC2,b,bp,t), V4(pk(1,bp,t))) for bp, t in ST4]+[(c2(aS2,b,bp,t), V4(pk(2,bp,t))) for bp, t in ST4])
    a.stamp(3)
    a('s_waitcnt vmcnt(0)\ns_nop 7\ns_nop 3')
    for b in range(2):
        def gw(e, j):
            w = W+16*b+e; c, s_ = TW+32+j, TW+36+j
            a(f'v_lshlrev_b32 v{c}, 16, v{w}\nv_and_b32 v{s_}, 0xffff0000, v{w}')
            return (c, s_)
        cmul(b, gw, False, 'i')
    a('s_nop 1')
    for b in range(2):
        mm(aR(b), [(V4(pk(0,bp,t)), c2(aC2,b,bp,t)) for bp, t in ST4]+[(V4(pk(2,bp,t)), c2(aS2,b,bp,t)) for bp, t in ST4])
        mm(aI(b), [(V4(pk(1,bp,t)), c2(aC2,b,bp,t)) for bp, t in ST4]+[(V4(pk(0,bp,t)), c2(aS2,b,bp,t)) for bp, t in ST4])
    a('s_nop 7\ns_nop 3')
    for b in range(2): cmul(b, lambda e, j: tw(2*b, e), False, None)
    a('s_nop 1')
    for b in range(2):
        mm(aR(b), [(ar(aC1+4*t,4), V4(pk(0,b,t))) for t in range(2)]+[(ar(aN1+4*t,4), V4(pk(1,b,t))) for t in range(2)])
        mm(aI(b), [(ar(aC1+4*t,4), V4(pk(1,b,t))) for t in range(2)]+[(ar(aS1+4*t,4), V4(pk(0,b,t))) for t in range(2)])
    a.stamp(4)
    a('''v_mul_u32_u24 v5, 4160, v4
    v_lshl_add_u32 v5, v3, 4, v5
    s_lshl_b32 s14, s3, 2
    v_add_u32 v5, s14, v5
    v_and_b32 v6, 31, v0
    v_mul_u32_u24 v6, 1040, v6
    v_lshrrev_b32 v7, 5, v0
    v_lshl_add_u32 v6, v7, 4, v6
    v_lshrrev_b32 v7, 4, v0
    v_mul_u32_u24 v7, 76800, v7
    v_and_b32 v8, 15, v0
    v_lshl_add_u32 v7, v8, 4, v7
    s_lshl_b32 s14, s12, 8
    s_add_u32 s14, s14, 55296''')
    for b in range(2):
        if b: a('s_nop 7')
        for e in range(16):
            a(f'v_cvt_pk_bf16_f32 v{PK+16*b+e}, v{aR(b)+e}, v{aI(b)+e}')
        for e in range(16):
            a(f'ds_write_b32 v5, v{PK+16*b+e} offset:{(R(e)*65+32*b)*16}')
    a('s_waitcnt lgkmcnt(0)\ns_barrier')
    a.stamp(5)
    for r in range(8): a(f'ds_read_b128 {vr(16+4*r,4)}, v6 offset:{r*128}')
    a('s_mov_b32 s15, s14')
    for r in range(8):
        a(f's_waitcnt lgkmcnt({7-r})\nbuffer_store_dwordx4 {vr(16+4*r,4)}, v7, s[28:31], s15 offen {ST}\ns_add_u32 s15, s15, {16*76800}')
    a('s_cmp_lg_u32 s12, 80\ns_cbranch_scc1 K2_FEND')
    for k in range(4): a(f'v_mov_b32 v{60+k}, 0')
    for r in range(8):
        for q in range(1, 4): a(f'buffer_store_dwordx4 v[60:63], v7, s[28:31], s14 offen offset:{q*256} {ST}')
        a(f's_add_u32 s14, s14, {16*76800}')
    a('K2_FEND:')
    a.end()

def gen_side(a, ST):
    a.cpf('K2_SIDE', 'K2_END', 1, vt=250)
    a('''s_sub_u32 s12, s2, 225
    s_mul_i32 s13, s12, 81920
    s_mul_i32 s14, s3, 20480
    s_add_u32 s13, s13, s14
    v_lshlrev_b32 v3, 4, v2
    s_waitcnt lgkmcnt(0)''')
    a.srd(16, 8, 1728*1280); a.srd(20, 10, BF_SZ, BF_OFF)
    sc = 1.0/(320*2048)
    a(f'''s_lshl_b32 s24, s12, 2
    s_add_u32 s24, s24, s3
    s_cmp_ge_u32 s24, 105
    s_cbranch_scc1 K2_S_NOTG
    s_mul_i32 s25, s24, 52429
    s_lshr_b32 s25, s25, 18
    s_mul_i32 s26, s25, 5
    s_sub_u32 s26, s24, s26
    v_and_b32 v4, 15, v2
    v_lshrrev_b32 v5, 4, v2
    v_lshrrev_b32 v6, 2, v4
    v_mul_u32_u24 v6, 20, v6
    v_and_b32 v4, 3, v4
    v_add_u32 v4, v4, v6
    s_lshl_b32 s27, s26, 2
    v_add_u32 v4, s27, v4
    v_cvt_f32_u32 v4, v4
    s_lshl_b32 s27, s25, 4
    v_lshl_add_u32 v5, v5, 2, s27
    v_mov_b32 v7, {fx(sc)}
    v_mov_b32 v8, {fx(sc/2)}
    v_mov_b32 v9, {fx(-sc)}
    s_mul_i32 s27, s26, 76800
    s_add_u32 s25, s25, 54
    s_lshl_b32 s25, s25, 10
    s_add_u32 s27, s27, s25''')
    for cc in range(4):
        a(f'''v_add_u32 v6, {cc}, v5
        v_cvt_f32_u32 v{16+cc}, v6
        v_cmp_eq_u32 vcc, 0, v6
        v_cmp_le_u32 s[28:29], v10, v6
        v_cmp_lt_u32 s[30:31], v10, v6
        s_or_b64 s[28:29], s[28:29], vcc
        s_nop 1
        v_cndmask_b32 v{20+cc}, v7, v8, s[28:29]
        v_cndmask_b32 v{24+cc}, v9, 0, s[28:29]
        v_cndmask_b32 v{20+cc}, v{20+cc}, 0, s[30:31]'''.replace('v_add_u32 v6', 'v_mov_b32 v10, 320\nv_add_u32 v6'))
    for nt in range(8):
        a(f'v_add_f32 v11, {fx(80.0*nt)}, v4')
        for cc in range(4): a(f'v_mul_f32 v{28+cc}, v11, v{16+cc}')
        for cc in range(4): a(f'v_mul_f32 v{28+cc}, {fx(1/640)}, v{28+cc}')
        for cc in range(4): a(f'v_fract_f32 v{28+cc}, v{28+cc}')
        for cc in range(4): a(f'v_cos_f32 v{32+cc}, v{28+cc}\nv_sin_f32 v{36+cc}, v{28+cc}')
        for cc in range(4): a(f'v_mul_f32 v{32+cc}, v{32+cc}, v{20+cc}\nv_mul_f32 v{36+cc}, v{36+cc}, v{24+cc}')
        o = 40+4*nt
        for cc in range(4): a(f'v_cvt_pk_bf16_f32 v{o+cc}, v{32+cc}, v{36+cc}')
        a(f'buffer_store_dwordx4 {vr(o,4)}, v3, s[20:23], s27 offen {ST}\ns_add_u32 s27, s27, {5*76800}')
    a('K2_S_NOTG:')
    for p in range(5):
        a(f's_add_u32 m0, s14, {p*4096}\ns_add_u32 s15, s13, {p*4096}')
        for k in range(4): a(f'buffer_load_dwordx4 v3, s[16:19], s15 offen offset:{k*1024} lds')
    a('''    v_bfe_u32 v4, v2, 4, 1
    v_lshrrev_b32 v5, 5, v2
    v_bfe_u32 v6, v2, 2, 2
    v_and_b32 v7, 3, v2
    v_lshl_add_u32 v6, v5, 2, v6
    v_lshl_add_u32 v6, v4, 4, v6
    v_mul_u32_u24 v6, 1280, v6
    v_mul_u32_u24 v7, 40, v7
    s_mul_i32 s14, s3, 320
    v_add3_u32 v6, v6, v7, s14
    v_add_u32 v7, 40960, v6
    s_mul_i32 s15, s3, 768000
    s_lshl_b32 s13, s12, 11
    s_add_u32 s15, s15, s13
    s_waitcnt vmcnt(0)
    s_barrier''')
    a.stamp(2)
    for ks in range(2):
        for nb in range(10):
            o = 80+40*ks+4*nb
            off = (nb//5)*160+(nb % 5)*8
            for u in range(2): a(f'ds_read_b64_tr_b16 {vr(o+2*u,2)}, v{6+ks} offset:{off+u*10240}')
        a('s_waitcnt lgkmcnt(0)')
        for nb in range(10):
            o = 80+40*ks+4*nb
            a(f's_add_u32 s13, s15, {nb*76800+ks*1024}\nbuffer_store_dwordx4 {vr(o,4)}, v3, s[20:23], s13 offen {ST}')
    a.end()

def gen_k2(a, ST=''):
    header(a, 'k2_kernel')
    a(f'''s_cmp_ge_u32 s2, {a.opts.get('k2n', 252)}
    s_cbranch_scc1 K2_END
    s_load_dwordx4 s[4:7], s[0:1], 32
    s_load_dwordx2 s[8:9], s[0:1], 48
    s_load_dwordx2 s[10:11], s[0:1], 80
    v_lshrrev_b32 v1, 6, v0
    v_and_b32 v2, 63, v0
    v_readfirstlane_b32 s3, v1
    s_cmp_ge_u32 s2, 225
    s_cbranch_scc1 K2_SIDE
    s_cmp_ge_u32 s2, 144
    s_cbranch_scc1 K2_FFT''')
    gen_gemm1(a, ST)
    a('K2_FFT:'); gen_fft(a, ST)
    a('K2_SIDE:'); gen_side(a, ST)
    a('K2_END:\ns_endpgm')
    return descriptor('k2_kernel', 256+120, 256)
```

```python
from common import *
def gen_k3(a, NS=6):
    header(a, 'k3_kernel')
    a('''s_cmp_ge_u32 s2, 256
    s_cbranch_scc1 K3_END
    s_load_dwordx2 s[4:5], s[0:1], 0
    s_load_dwordx4 s[8:11], s[0:1], 56
    s_load_dwordx2 s[6:7], s[0:1], 80
    v_lshrrev_b32 v1, 6, v0
    v_and_b32 v2, 63, v0
    v_readfirstlane_b32 s3, v1
    s_and_b32 s12, s2, 7
    s_lshr_b32 s13, s2, 3
    s_lshr_b32 s14, s12, 1
    s_lshl_b32 s14, s14, 3
    s_lshr_b32 s15, s13, 2
    s_add_u32 s14, s14, s15
    s_and_b32 s12, s12, 1
    s_lshl_b32 s12, s12, 2
    s_and_b32 s13, s13, 3
    s_add_u32 s15, s12, s13
    v_lshlrev_b32 v3, 4, v2''')
    for k in range(4):
        a(f'''s_add_u32 s12, s3, {k}
        s_and_b32 s12, s12, 3
        s_lshl_b32 s13, s14, 2
        s_add_u32 s12, s12, s13
        s_mul_i32 s12, s12, 76800
        v_add_u32 v{4+k}, s12, v3''')
    a('s_mul_i32 s12, s15, 384000')
    for k in range(5):
        a(f'v_add_u32 v{8+k}, s12, v3')
        if k < 4: a('s_add_u32 s12, s12, 76800')
    ROT = a.opts.get('rot')
    a('s_lshl_b32 s32, s3, 10')
    if ROT:
        ra, rb = [int(x) for x in ROT.split(',')]
        a(f'''s_lshr_b32 s12, s2, 3
        s_and_b32 s13, s12, 3
        s_mul_i32 s13, s13, {ra}
        s_lshr_b32 s12, s12, 2
        s_mul_i32 s12, s12, {rb}
        s_lshr_b32 s12, s12, 3
        s_add_u32 s12, s12, s13
        s_cmp_ge_u32 s12, 19
        s_cselect_b32 s13, 19, 0
        s_sub_u32 s12, s12, s13
        s_lshl_b32 s12, s12, 12
        s_add_u32 s32, s32, s12''')
    a('s_waitcnt lgkmcnt(0)')
    a.srd(16, 6, AF_SZ, AF_OFF); a.srd(20, 6, BF_SZ, BF_OFF)
    def loads(i):
        sl = (i % NS)*36; out = []
        sb = 's32'
        pre = ''
        post = 's_add_u32 s32, s32, 4096'
        if ROT:
            pre = f's_cmp_eq_u32 s32, {75*1024}\ns_cselect_b32 s33, {OOB}, s32\n'; sb = 's33'
            post += f'\ns_cmp_ge_u32 s32, {76*1024}\ns_cselect_b32 s34, {76*1024}, 0\ns_sub_u32 s32, s32, s34'
        elif i == 18:
            pre = f's_cmp_eq_u32 s3, 3\ns_cselect_b32 s33, {OOB}, s32\n'; sb = 's33'
        for k in range(5): out.append((pre if k == 0 else '')+f'buffer_load_dwordx4 {ar(sl+16+4*k,4)}, v{8+k}, s[20:23], {sb} offen')
        for k in range(4): out.append(f'buffer_load_dwordx4 {ar(sl+4*k,4)}, v{4+k}, s[16:19], s32 offen'+('\n'+post if k == 3 else ''))
        return out
    for i in range(NS-1):
        for x in loads(i): a(x)
    CP = a.cpf('k3_kernel', 'K3_END', 1, vt=240)
    a.stamp(1)
    a.srd(24, 4, 2048*1280); a.srd(28, 8, 1280); a.srd(36, 10, 2048*1280)
    a('''s_lshl_b32 s12, s14, 2
    s_add_u32 s12, s12, s3
    s_lshl_b32 s12, s12, 4
    v_and_b32 v13, 15, v2
    v_add_u32 v13, s12, v13
    v_lshrrev_b32 v14, 5, v13
    v_and_b32 v13, 31, v13
    v_lshl_add_u32 v13, v13, 6, v14
    v_mul_u32_u24 v13, 1280, v13
    v_lshrrev_b32 v14, 4, v2
    v_mul_u32_u24 v14, 40, v14
    s_mul_i32 s12, s15, 160
    v_add_u32 v14, s12, v14
    v_add_u32 v13, v13, v14''')
    AC = 16; XR = 96; BR = 108
    acc = lambda sa, blk: AC+20*sa+4*blk
    XL = [f'buffer_load_dwordx4 {vr(XR,4)}, v13, s[24:27], 0 offen',
          f'buffer_load_dwordx4 {vr(XR+4,4)}, v13, s[24:27], 0 offen offset:16',
          f'buffer_load_dwordx2 {vr(XR+8,2)}, v13, s[24:27], 0 offen offset:32',
          f'buffer_load_dwordx4 {vr(BR,4)}, v14, s[28:31], 0 offen',
          f'buffer_load_dwordx4 {vr(BR+4,4)}, v14, s[28:31], 0 offen offset:16',
          f'buffer_load_dwordx2 {vr(BR+8,2)}, v14, s[28:31], 0 offen offset:32']
    for i in range(19):
        sl = (i % NS)*36
        issued = min(18, i+NS-2)
        a(f's_waitcnt vmcnt({9*(issued-i)+(6 if i > 20-NS else 0)+(CP if i < NS-1 else 0)})')
        if i in (0, 6, 12): a.stamp(2+i//6)
        m = [f'v_mfma_f32_16x16x32_bf16 {vr(acc(sa,blk),4)}, {ar(sl+16+4*blk,4)}, {ar(sl+4*sa,4)}, {vr(acc(sa,blk),4) if i else 0}' for blk in range(5) for sa in range(4)]
        f = loads(i+NS-1) if i+NS-1 <= 18 else (XL if i == 20-NS else [])
        for j, x in enumerate(m):
            a(x)
            if j % 2 == 0 and j//2 < len(f): a(f[j//2])
    a.stamp(5)
    for k in range(1, 4):
        a(f'''s_add_u32 s12, s3, {k}
        s_and_b32 s12, s12, 3
        s_mul_i32 s12, s12, 15360
        s_add_u32 s12, s12, {(k-1)*5120}
        v_add_u32 v{4+k}, s12, v3''')
    a('s_mul_i32 s12, s3, 15360\nv_add_u32 v4, s12, v3')
    for k in range(1, 4):
        for blk in range(5): a(f'ds_write_b128 v{4+k}, {vr(acc(k,blk),4)} offset:{blk*1024}')
    a('s_waitcnt vmcnt(0)')
    for j in range(10):
        a(f'''v_lshlrev_b32 v{120+2*j}, 16, v{XR+j}
        v_and_b32 v{121+2*j}, 0xffff0000, v{XR+j}
        v_lshlrev_b32 v{140+2*j}, 16, v{BR+j}
        v_and_b32 v{141+2*j}, 0xffff0000, v{BR+j}
        v_pk_add_f32 {vr(AC+2*j,2)}, {vr(AC+2*j,2)}, {vr(120+2*j,2)}
        v_pk_add_f32 {vr(AC+2*j,2)}, {vr(AC+2*j,2)}, {vr(140+2*j,2)}''')
    a('s_waitcnt lgkmcnt(0)\ns_barrier')
    a.stamp(6)
    for k in range(3):
        for blk in range(5): a(f'ds_read_b128 {vr(120+20*k+4*blk,4)}, v4 offset:{k*5120+blk*1024}')
    for k in range(3):
        a(f's_waitcnt lgkmcnt({10-5*k})')
        for j in range(10): a(f'v_pk_add_f32 {vr(AC+2*j,2)}, {vr(AC+2*j,2)}, {vr(120+20*k+2*j,2)}')
    for j in range(10): a(f'v_cvt_pk_bf16_f32 v{XR+j}, v{AC+2*j}, v{AC+2*j+1}')
    a(f'''buffer_store_dwordx4 {vr(XR,4)}, v13, s[36:39], 0 offen
    buffer_store_dwordx4 {vr(XR+4,4)}, v13, s[36:39], 0 offen offset:16
    buffer_store_dwordx2 {vr(XR+8,2)}, v13, s[36:39], 0 offen offset:32''')
    a.end()
    a('K3_END:\ns_endpgm')
    return descriptor('k3_kernel', 256+36*NS, 256)
```

```python
import sys
from common import *
from k1 import gen_k1
from k2 import gen_k2
from k3 import gen_k3
NAME = 'parallel_sum__spectral_gfnet__mixer_channel_mlp__prompt'
def build(opts):
    ref = open(f'cdna_kernels/{NAME}.s.ref').read().split('\n')
    hdr = [l for l in ref if l.startswith(';') and '@launch' not in l and 'Override' not in l and 'grid=ceil' not in l][:13]
    hdr += [f'; @launch kernel=k1_kernel grid=({352+int(opts.get("npf", 32))},1,1) block=(256,1,1) lds=40960',
            f'; @launch kernel=k2_kernel grid=(252,1,1) block=(256,1,1) lds=163840',
            f'; @launch kernel=k3_kernel grid=(256,1,1) block=(256,1,1) lds={opts.get("lds3", 90112)}']
    if opts.get('dup'):
        i = len(hdr)-4+int(opts['dup']); hdr.insert(i, hdr[i])
    for _ in range(int(opts.get('empty', 0))): hdr.append('; @launch kernel=k4_kernel grid=(256,1,1) block=(256,1,1) lds=0')
    a = Asm(); a.opts = opts; a.diag = bool(opts.get('diag'))
    a('.amdgcn_target "amdgcn-amd-amdhsa--gfx950"\n.text')
    d = gen_k1(a, opts.get('st1', '')) + gen_k2(a, opts.get('st2', '')) + gen_k3(a, int(opts.get('ns', 6)))
    if opts.get('empty'):
        a('.globl k4_kernel\n.p2align 8\n.type k4_kernel,@function\nk4_kernel:\ns_endpgm'); d += descriptor('k4_kernel', 32, 32)
    out = '\n'.join(hdr) + '\n' + a.text() + '.section .rodata,"a"\n'
    for blk in d.split('.end_amdhsa_kernel\n')[:-1]:
        out += '.p2align 6\n' + blk + '.end_amdhsa_kernel\n'
    return out
if __name__ == '__main__':
    opts = dict(x.split('=') for x in sys.argv[2:])
    opts = {k: v.replace('+', ' ') for k, v in opts.items()}
    path = sys.argv[1] if len(sys.argv) > 1 and sys.argv[1] != '-' else f'cdna_kernels/{NAME}.s'
    open(path, 'w').write(build(opts))
```

```python
from common import *
import math
def gen_gemm1(a, ST):
    if a.opts.get('xm'):
        a('''s_and_b32 s12, s2, 1
        s_mul_i32 s12, s12, 18
        s_lshr_b32 s13, s2, 3
        s_add_u32 s13, s13, s12
        s_and_b32 s14, s13, 3
        s_lshr_b32 s13, s13, 2
        s_and_b32 s12, s2, 6
        s_lshl_b32 s12, s12, 1
        s_add_u32 s12, s12, s14''')
    else:
        a('''s_and_b32 s12, s2, 7
        s_lshr_b32 s13, s2, 3
        s_and_b32 s14, s13, 1
        s_lshl_b32 s12, s12, 1
        s_add_u32 s12, s12, s14
        s_lshr_b32 s13, s13, 1''')
    a(f'''    s_and_b32 s14, s3, 1
    s_lshr_b32 s15, s3, 1
    v_lshrrev_b32 v3, 3, v2
    v_and_b32 v4, 7, v2
    v_lshlrev_b32 v5, 1, v3
    v_and_b32 v5, 4, v5
    v_xor_b32 v4, v4, v5
    v_mul_u32_u24 v3, {int(a.opts.get('wpitch', 3456))}, v3
    v_lshl_add_u32 v3, v4, 4, v3
    v_lshlrev_b32 v4, 4, v2
    v_lshrrev_b32 v5, 5, v2
    v_lshlrev_b32 v6, 3, v5
    s_mul_i32 s32, s3, 55296
    s_mul_i32 s33, s13, 384
    s_add_u32 s32, s32, s33
    s_lshl_b32 s34, s12, 2
    s_add_u32 s34, s34, s3
    s_mul_i32 s34, s34, 40960
    s_mul_i32 s35, s14, 192
    s_add_u32 s35, s35, s33
    s_lshl_b32 s36, s3, 11
    s_lshl_b32 s37, s3, 12
    s_add_u32 s37, s37, 24576
    s_waitcnt lgkmcnt(0)''')
    a.srd(16, 4, 640*3456); a.srd(20, 10, YF_SZ, YF_OFF); a.srd(24, 6, 3456); a.srd(28, 10, AF_SZ, AF_OFF)
    BI = 160
    for fb in range(3):
        for g in range(4):
            a(f'buffer_load_dwordx2 {vr(BI+8*fb+2*g,2)}, v6, s[24:27], s35 offen offset:{fb*64+g*16}')
    def dma(st):
        slot = (st % 4)*40960
        out = []
        for fp in range(3):
            for kk in range(2):
                out.append(f'''s_add_u32 m0, s36, {slot+fp*8192+kk*1024}
                s_add_u32 s38, s32, {st*64*3456+kk*8*3456+fp*128}
                buffer_load_dwordx4 v3, s[16:19], s38 offen lds''')
        out.append(f'''s_add_u32 m0, s37, {slot}
        s_add_u32 s38, s34, {st*4096}
        buffer_load_dwordx4 v4, s[20:23], s38 offen lds''')
        for ks in range(1, 4): out.append(f'buffer_load_dwordx4 v4, s[20:23], s38 offen offset:{ks*1024} lds')
        return out
    for st in range(2):
        for x in dma(st): a(x)
    CP = a.cpf('k2_kernel', 'K2_FFT', 1, vt=240)
    a.stamp(1)
    a('''v_bfe_u32 v7, v2, 2, 2
    v_and_b32 v8, 3, v2
    v_bfe_u32 v9, v2, 4, 1
    v_lshlrev_b32 v10, 10, v5
    v_lshl_add_u32 v10, v7, 7, v10
    v_lshl_add_u32 v10, v9, 5, v10
    v_lshl_add_u32 v10, v8, 3, v10
    v_lshrrev_b32 v7, 1, v7
    v_xor_b32 v7, s14, v7
    v_lshl_add_u32 v11, v7, 6, v10
    v_xor_b32 v12, 64, v11
    s_lshl_b32 s39, s14, 13
    s_lshl_b32 s40, s15, 13
    s_add_u32 s40, s40, 24576''')
    WA = 16
    for sl in range(4):
        a(f'''s_add_u32 s41, s39, {sl*40960}
        v_add_u32 v{WA+4*sl}, s41, v11
        s_add_u32 s41, s41, s39
        v_add_u32 v{WA+4*sl+1}, s41, v12
        s_add_u32 s41, s40, {sl*40960}
        v_add_u32 v{WA+4*sl+2}, s41, v4''')
    AC = 32
    FR = 128
    FB = [192, 212]
    acc = lambda fb, tb: AC+32*fb+16*tb
    a(f's_waitcnt vmcnt({20+CP})')
    for fb in range(3):
        for g in range(4):
            for p in range(2):
                src = BI+8*fb+2*g+p
                for tb in range(2):
                    d = acc(fb, tb)+4*g+2*p
                    a(f'v_lshlrev_b32 v{d}, 16, v{src}\nv_and_b32 v{d+1}, 0xffff0000, v{src}')
    def reads(st, ks, buf):
        sl = st % 4; b = FB[buf]; out = []
        for tb in range(2): out.append(f'ds_read_b128 {vr(b+12+4*tb,4)}, v{WA+4*sl+2} offset:{tb*4096+ks*1024}')
        for fb in range(3):
            reg = WA+4*sl+(1 if fb == 1 else 0); off = ks*2048+(8192 if fb == 2 else 0)
            for u in range(2): out.append(f'ds_read_b64_tr_b16 {vr(b+4*fb+2*u,2)}, v{reg} offset:{off+u*512}')
        return out
    def mf(buf):
        b = FB[buf]
        return [f'v_mfma_f32_32x32x16_bf16 {vr(acc(fb,tb),16)}, {vr(b+4*fb,4)}, {vr(b+12+4*tb,4)}, {vr(acc(fb,tb),16)}' for fb in range(3) for tb in range(2)]
    def weave(m, r, f):
        n = len(m); k = 0
        for i, x in enumerate(m):
            a(x)
            for y in r[3*i:3*i+3]: a(y)
            e = (len(f)*(i+1)+n-1)//n
            while k < e: a(f[k]); k += 1
    a(f's_waitcnt vmcnt({10+CP})\ns_barrier')
    a.stamp(2)
    for x in reads(0, 0, 0): a(x)
    buf = 0
    pend = dma(2)+dma(3)
    issued = {0: 10, 1: 10}
    order = [2]*10+[3]*10
    nq = 20
    def take(n):
        out = []
        for _ in range(n):
            if pend: out.append(pend.pop(0))
        return out
    total_issued = [20]
    def rd(ks, fb, d):
        reg = WA+4+(1 if fb == 1 else 0); off = ks*2048+(8192 if fb == 2 else 0)
        return [f'ds_read_b64_tr_b16 {vr(d+2*u,2)}, v{reg} offset:{off+u*512}' for u in range(2)]
    area = [lambda n: 232+4*n, lambda n: 176+4*n]
    for st in range(9):
        if st == 4: a.stamp(3)
        for ks in range(4):
            if ks < 3:
                a('s_waitcnt lgkmcnt(0)')
                f = take(int(a.opts.get('tk', 5)) if st == 0 else 3); total_issued[0] += len(f)
                weave(mf(buf), reads(st, ks+1, buf ^ 1), f)
            else:
                if st < 9:
                    a(f's_waitcnt lgkmcnt(0) vmcnt({total_issued[0]-10*(st+2)+(CP if st == 0 else 0)})\ns_barrier')
                    if st+4 <= 9: pend += dma(st+4)
                    m = mf(buf); r = reads(st+1, 0, buf ^ 1)
                    if st == 8:
                        r = [x for k in range(4) for x in rd(k, 0, area[0](k))+[f'ds_read_b128 {ar(8*k+4*tb,4)}, v{WA+6} offset:{tb*4096+k*1024}' for tb in range(2)]]
                    for x in r[:3]: a(x)
                    f = take(int(a.opts.get('tk', 5)) if st == 0 else 3); total_issued[0] += len(f)
                    weave(m, r[3:], f)
                else:
                    a('s_waitcnt lgkmcnt(0)')
                    weave(mf(buf), [], [])
            buf ^= 1
    assert not pend
    a.stamp(4)
    c0 = -2*math.log2(math.e)*math.sqrt(2/math.pi); c1 = c0*0.044715
    setup = f'''s_mov_b32 s42, {fx(c1)}
    s_mov_b32 s43, s42
    v_mov_b32 v8, {fx(c0)}
    v_mov_b32 v9, {fx(c0)}
    v_bfe_u32 v6, v2, 4, 1
    v_mul_u32_u24 v6, 76800, v6
    v_lshl_add_u32 v6, v5, 9, v6
    v_and_b32 v7, 15, v2
    v_lshl_add_u32 v6, v7, 4, v6
    s_lshl_b32 s38, s12, 1
    s_add_u32 s38, s38, s15
    s_mul_i32 s38, s38, 307200
    s_mul_i32 s39, s13, 6144
    s_mul_i32 s40, s14, 3072
    s_add_u32 s38, s38, s39
    s_add_u32 s38, s38, s40
    s_add_u32 s39, s38, 153600
'''.split('\n')
    T = 128
    def gelu(n):
        fb, tb = n//2, n % 2
        x = acc(fb, tb); t = T+16*(n % 2); o = 16+8*(n % 2) if fb == 2 else 248
        l = [f'v_pk_mul_f32 {vr(t+2*k,2)}, {vr(x+2*k,2)}, {vr(x+2*k,2)}' for k in range(8)]
        l += [f'v_pk_fma_f32 {vr(t+2*k,2)}, {vr(t+2*k,2)}, s[42:43], v[8:9]' for k in range(8)]
        l += [f'v_pk_mul_f32 {vr(t+2*k,2)}, {vr(t+2*k,2)}, {vr(x+2*k,2)}' for k in range(8)]
        l += [f'v_exp_f32 v{t+k}, v{t+k}' for k in range(16)]
        l += [f'v_pk_add_f32 {vr(t+2*k,2)}, {vr(t+2*k,2)}, 1.0 op_sel_hi:[1,0]' for k in range(8)]
        l += [f'v_rcp_f32 v{t+k}, v{t+k}' for k in range(16)]
        l += [f'v_pk_mul_f32 {vr(t+2*k,2)}, {vr(t+2*k,2)}, {vr(x+2*k,2)}' for k in range(8)]
        l += [f'v_cvt_pk_bf16_f32 v{o+k}, v{t+2*k}, v{t+2*k+1}' for k in range(8)]
        l += [f'buffer_store_dwordx4 {vr(o+4*tt,4)}, v6, s[28:31], s{38+tb} offen offset:{fb*1024+tt*256} {ST}' for tt in range(2)]
        return l
    for fb in range(3):
        a('s_waitcnt lgkmcnt(0)')
        m = [f'v_mfma_f32_32x32x16_bf16 {vr(acc(fb,tb),16)}, {vr(area[fb % 2](k),4)}, {ar(8*k+4*tb,4)}, {vr(acc(fb,tb),16)}' for k in range(4) for tb in range(2)]
        r = [x for k in range(4) for x in rd(k, fb+1, area[(fb+1) % 2](k))] if fb < 2 else []
        if fb == 0: weave(m, r, setup)
        else:
            weave(m[:3], [], [])
            g = gelu(2*fb-2)+gelu(2*fb-1)
            weave(m[3:], [], g[:40])
            for x in r+g[40:]: a(x)
    a('s_nop 7\ns_nop 7')
    for x in gelu(4)+gelu(5): a(x)
    a.stamp(5)
    a.end()

def gen_fft(a, ST):
    a.cpf('K2_FFT', 'K2_SIDE', 1, vt=250, dst=16)
    a(f'''s_sub_u32 s12, s2, 144
    s_lshr_b32 s34, s12, 2
    s_sub_u32 s35, s34, 4
    s_and_b32 s36, s35, 3
    s_add_u32 s36, s36, 1
    s_lshr_b32 s35, s35, 2
    s_cmp_lt_u32 s34, 4
    s_cselect_b32 s36, 0, s36
    s_cselect_b32 s35, s34, s35
    s_lshl_b32 s35, s35, 2
    s_and_b32 s34, s12, 3
    s_add_u32 s35, s35, s34
    s_lshl_b32 s35, s35, 2
    s_add_u32 s35, s35, s3
    s_mul_i32 s35, s35, 5
    s_add_u32 s13, s35, s36
    s_add_u32 s35, s3, 320
    s_cmp_eq_u32 s12, 80
    s_cselect_b32 s13, s35, s13
    s_lshl_b32 s14, s13, 13
    s_add_u32 s15, s14, 4096
    s_mov_b32 s33, s15
    s_cmp_eq_u32 s13, 0
    s_cselect_b32 s15, {OOB}, s15
    s_cmp_ge_u32 s13, 320
    s_cselect_b32 s15, {OOB}, s15
    v_and_b32 v3, 31, v2
    v_lshrrev_b32 v4, 5, v2
    v_lshlrev_b32 v5, 6, v3
    v_lshl_add_u32 v5, v4, 5, v5
    v_lshlrev_b32 v6, 4, v2
    s_waitcnt lgkmcnt(0)''')
    a.srd(16, 10, X1T_SZ, X1T_OFF); a.srd(20, 10, WT_SZ, WT_OFF); a.srd(28, 10, AF_SZ, AF_OFF)
    aXr = lambda b, t: ar(8*b+4*t, 4)
    aXi = lambda b, t: ar(16+8*b+4*t, 4)
    aC1, aS1, aN1, aC2, aS2 = 32, 40, 48, 56, 88
    c2 = lambda base, b, bp, t: ar(base+16*b+8*bp+4*t, 4)
    W = 16; ACC = 48; PK = 112; TW = 160
    for b in range(2):
        for t in range(2):
            a(f'buffer_load_dwordx4 {aXr(b,t)}, v5, s[16:19], s14 offen offset:{b*2048+t*16}')
            a(f'buffer_load_dwordx4 {aXi(b,t)}, v5, s[16:19], s15 offen offset:{b*2048+t*16}')
    a(f'''v_cvt_f32_u32 v7, v3
    v_lshlrev_b32 v8, 2, v4
    v_cvt_f32_u32 v8, v8
    v_and_b32 v15, 1, v2
    v_mul_u32_u24 v15, 0x8000, v15
    v_lshl_or_b32 v15, v15, 16, v15''')
    R = lambda e: 8*(e//4)+e % 4
    def angles(dst, scale, ladd=0.0, extra=None):
        a(f'v_add_f32 v9, {fx(ladd)}, v7\nv_mul_f32 v9, {fx(scale)}, v9\nv_mul_f32 v10, v9, v8')
        if extra: a(f'v_fmamk_f32 v10, v7, {fx(extra)}, v10')
        for e in range(16): a(f'v_fmamk_f32 v{dst+e}, v9, {fx(float(R(e)))}, v10')
    T0, T1, T2 = ACC, ACC+16, ACC+32
    P = PK
    angles(T0, 1/32)
    for e in range(16): a(f'v_cos_f32 v{T1+e}, v{T0+e}\nv_sin_f32 v{T2+e}, v{T0+e}')
    for k in range(8): a(f'v_cvt_pk_bf16_f32 v{P+k}, v{T1+2*k}, v{T1+2*k+1}\nv_cvt_pk_bf16_f32 v{P+8+k}, v{T2+2*k}, v{T2+2*k+1}\nv_cvt_pk_bf16_f32 v{P+16+k}, -v{T2+2*k}, -v{T2+2*k+1}')
    for k in range(24): a(f'v_accvgpr_write_b32 a{aC1+k}, v{P+k}')
    tw = lambda s, e: (TW+32*s+e, TW+32*s+16+e)
    for s_, (ladd, extra) in enumerate([(0.0, None), (0.0, 1/64), (32.0, None)]):
        angles(T0, 1/2048, ladd, extra)
        for e in range(16): a(f'v_cos_f32 v{tw(s_,e)[0]}, v{T0+e}\nv_sin_f32 v{tw(s_,e)[1]}, v{T0+e}')
    angles(T0, 1/64)
    for e in range(16): a(f'v_cos_f32 v{T1+e}, v{T0+e}\nv_sin_f32 v{T2+e}, v{T0+e}')
    for k in range(8): a(f'v_cvt_pk_bf16_f32 v{P+k}, v{T1+2*k}, v{T1+2*k+1}\nv_cvt_pk_bf16_f32 v{P+8+k}, v{T2+2*k}, v{T2+2*k+1}')
    for m, base in enumerate([aC2, aS2]):
        for k in range(8):
            s_ = P+8*m+k
            a(f'''v_xor_b32 v11, v15, v{s_}
            v_xor_b32 v12, 0x80000000, v{s_}
            v_accvgpr_write_b32 a{base+k}, v{s_}
            v_xor_b32 v13, 0x80000000, v11
            v_accvgpr_write_b32 a{base+8+k}, v11
            v_accvgpr_write_b32 a{base+16+k}, v12
            v_accvgpr_write_b32 a{base+24+k}, v13''')
    aR = lambda b: ACC+32*b
    aI = lambda b: ACC+32*b+16
    pk = lambda which, b, t=0: PK+16*which+8*b+4*t
    def mm(d, terms):
        for i, (x, y) in enumerate(terms):
            a(f'v_mfma_f32_32x32x16_bf16 {vr(d,16)}, {x}, {y}, {vr(d,16) if i else 0}')
    def cmul(b, getw, conj, neg):
        for e0 in range(0, 16, 4):
            ws = [getw(e0+j, j) for j in range(4)]
            for j in range(4):
                e = e0+j; c, s_ = ws[j]
                a(f'v_mul_f32 v{8+j}, v{aI(b)+e}, v{s_}\nv_mul_f32 v{12+j}, v{aR(b)+e}, v{s_}')
            for j in range(4):
                e = e0+j; c, s_ = ws[j]
                if conj:
                    a(f'v_fma_f32 v{aR(b)+e}, v{aR(b)+e}, v{c}, v{8+j}\nv_fma_f32 v{aI(b)+e}, v{aI(b)+e}, v{c}, -v{12+j}')
                else:
                    a(f'v_fma_f32 v{aR(b)+e}, v{aR(b)+e}, v{c}, -v{8+j}\nv_fma_f32 v{aI(b)+e}, v{aI(b)+e}, v{c}, v{12+j}')
        for k in range(8):
            r_, i_ = aR(b)+2*k, aI(b)+2*k
            a(f'v_cvt_pk_bf16_f32 v{pk(0,b)+k}, v{r_}, v{r_+1}\nv_cvt_pk_bf16_f32 v{pk(1,b)+k}, v{i_}, v{i_+1}')
            if neg is not None:
                q = r_ if neg == 'r' else i_
                a(f'v_cvt_pk_bf16_f32 v{pk(2,b)+k}, -v{q}, -v{q+1}')
    V4 = lambda r: vr(r, 4)
    for b in range(2):
        for g in range(4):
            a(f'buffer_load_dwordx4 {vr(W+16*b+4*g,4)}, v6, s[20:23], s{14 if b==0 else 33} offen offset:{g*1024}')
    a.stamp(1)
    a('s_waitcnt vmcnt(8)')
    a.stamp(2)
    for b in range(2):
        mm(aR(b), [(aXr(b,t), ar(aC1+4*t,4)) for t in range(2)]+[(aXi(b,t), ar(aS1+4*t,4)) for t in range(2)])
        mm(aI(b), [(aXi(b,t), ar(aC1+4*t,4)) for t in range(2)]+[(aXr(b,t), ar(aN1+4*t,4)) for t in range(2)])
    a('s_nop 7')
    for b in range(2):
        if b: a('s_nop 3')
        cmul(b, lambda e, j: tw(b, e), True, 'r')
    a('s_nop 1')
    ST4 = [(bp, t) for bp in range(2) for t in range(2)]
    for b in range(2):
        mm(aR(b), [(c2(aC2,b,bp,t), V4(pk(0,bp,t))) for bp, t in ST4]+[(c2(aS2,b,bp,t), V4(pk(1,bp,t))) for bp, t in ST4])
        mm(aI(b), [(c2(aC2,b,bp,t), V4(pk(1,bp,t))) for bp, t in ST4]+[(c2(aS2,b,bp,t), V4(pk(2,bp,t))) for bp, t in ST4])
    a.stamp(3)
    a('s_waitcnt vmcnt(0)\ns_nop 7\ns_nop 3')
    for b in range(2):
        def gw(e, j):
            w = W+16*b+e; c, s_ = TW+32+j, TW+36+j
            a(f'v_lshlrev_b32 v{c}, 16, v{w}\nv_and_b32 v{s_}, 0xffff0000, v{w}')
            return (c, s_)
        cmul(b, gw, False, 'i')
    a('s_nop 1')
    for b in range(2):
        mm(aR(b), [(V4(pk(0,bp,t)), c2(aC2,b,bp,t)) for bp, t in ST4]+[(V4(pk(2,bp,t)), c2(aS2,b,bp,t)) for bp, t in ST4])
        mm(aI(b), [(V4(pk(1,bp,t)), c2(aC2,b,bp,t)) for bp, t in ST4]+[(V4(pk(0,bp,t)), c2(aS2,b,bp,t)) for bp, t in ST4])
    a('s_nop 7\ns_nop 3')
    for b in range(2): cmul(b, lambda e, j: tw(2*b, e), False, None)
    a('s_nop 1')
    for b in range(2):
        mm(aR(b), [(ar(aC1+4*t,4), V4(pk(0,b,t))) for t in range(2)]+[(ar(aN1+4*t,4), V4(pk(1,b,t))) for t in range(2)])
        mm(aI(b), [(ar(aC1+4*t,4), V4(pk(1,b,t))) for t in range(2)]+[(ar(aS1+4*t,4), V4(pk(0,b,t))) for t in range(2)])
    a.stamp(4)
    a('''v_mul_u32_u24 v5, 4160, v4
    v_lshl_add_u32 v5, v3, 4, v5
    s_lshl_b32 s14, s3, 2
    v_add_u32 v5, s14, v5
    v_and_b32 v6, 31, v0
    v_mul_u32_u24 v6, 1040, v6
    v_lshrrev_b32 v7, 5, v0
    v_lshl_add_u32 v6, v7, 4, v6
    v_lshrrev_b32 v7, 4, v0
    v_mul_u32_u24 v7, 76800, v7
    v_and_b32 v8, 15, v0
    v_lshl_add_u32 v7, v8, 4, v7
    s_lshl_b32 s14, s12, 8
    s_add_u32 s14, s14, 56320
    s_cmp_eq_u32 s12, 80
    s_cselect_b32 s14, 55296, s14''')
    for b in range(2):
        if b: a('s_nop 7')
        for e in range(16):
            a(f'v_cvt_pk_bf16_f32 v{PK+16*b+e}, v{aR(b)+e}, v{aI(b)+e}')
        for e in range(16):
            a(f'ds_write_b32 v5, v{PK+16*b+e} offset:{(R(e)*65+32*b)*16}')
    a('s_waitcnt lgkmcnt(0)\ns_barrier')
    a.stamp(5)
    for r in range(8): a(f'ds_read_b128 {vr(16+4*r,4)}, v6 offset:{r*128}')
    a('s_mov_b32 s15, s14')
    for r in range(8):
        a(f's_waitcnt lgkmcnt({7-r})\nbuffer_store_dwordx4 {vr(16+4*r,4)}, v7, s[28:31], s15 offen {ST}\ns_add_u32 s15, s15, {16*76800}')
    a('s_cmp_lg_u32 s12, 80\ns_cbranch_scc1 K2_FEND')
    for k in range(4): a(f'v_mov_b32 v{60+k}, 0')
    for r in range(8):
        for q in range(1, 4): a(f'buffer_store_dwordx4 v[60:63], v7, s[28:31], s14 offen offset:{q*256} {ST}')
        a(f's_add_u32 s14, s14, {16*76800}')
    a('K2_FEND:')
    a.end()

def gen_side(a, ST):
    a.cpf('K2_SIDE', 'K2_END', 1, vt=250)
    a('''s_sub_u32 s12, s2, 225
    s_mul_i32 s13, s12, 81920
    s_mul_i32 s14, s3, 20480
    s_add_u32 s13, s13, s14
    v_lshlrev_b32 v3, 4, v2
    s_waitcnt lgkmcnt(0)''')
    a.srd(16, 8, 1728*1280); a.srd(20, 10, BF_SZ, BF_OFF)
    TN = int(a.opts.get('tn', 0))
    if TN:
        a.srd(40, 4, 640*3456); a.srd(48, 10, YF_SZ, YF_OFF)
        a(f'''s_sub_u32 s34, s2, 224
        s_lshr_b32 s34, s34, 3
        s_lshl_b32 s34, s34, 2
        s_add_u32 s34, s34, s3
        s_and_b32 s35, s2, 1
        s_mul_i32 s35, s35, 1536
        s_add_u32 s35, s35, {2*64*3456}
        s_and_b32 s36, s2, 6
        s_lshl_b32 s36, s36, 3
        s_add_u32 s36, s36, s34
        s_mul_i32 s36, s36, 40960
        v_mul_u32_u24 v13, 3456, v2
        v_lshlrev_b32 v14, 7, v2''')
        for k in range(TN):
            a(f'''s_mul_i32 s38, s34, 4370
            s_lshr_b32 s38, s38, 16
            s_mul_i32 s39, s38, 15
            s_sub_u32 s37, s34, s39
            s_lshl_b32 s37, s37, 7
            s_mul_i32 s38, s38, {64*3456}
            s_add_u32 s37, s37, s38
            s_add_u32 s37, s37, s35
            buffer_load_dword a{k}, v13, s[40:43], s37 offen
            s_add_u32 s34, s34, 16''')
            if k % 2 == 0: a(f's_add_u32 s36, s36, 8192\nbuffer_load_dword a{16+k}, v14, s[48:51], s36 offen')
    sc = 1.0/(320*2048)
    a(f'''s_lshl_b32 s24, s12, 2
    s_add_u32 s24, s24, s3
    s_cmp_ge_u32 s24, 41
    s_cbranch_scc1 K2_S_NOTG
    s_sub_u32 s25, s24, 4
    s_lshr_b32 s25, s25, 1
    s_and_b32 s26, s24, 1
    s_and_b32 s34, s25, 3
    s_add_u32 s34, s34, 1
    s_lshr_b32 s35, s25, 2
    s_add_u32 s25, s25, 59
    s_add_u32 s36, s24, 55
    s_cmp_lt_u32 s24, 4
    s_cselect_b32 s26, 0, s26
    s_cselect_b32 s34, 0, s34
    s_cselect_b32 s35, s24, s35
    s_cselect_b32 s25, s36, s25
    s_mul_i32 s35, s35, 80
    s_add_u32 s34, s34, s35
    s_cmp_eq_u32 s26, 1
    s_cselect_b32 s35, {fx(0.75)}, 0
    s_sub_u32 s36, s24, 36
    s_cmp_ge_u32 s24, 36
    s_cselect_b32 s26, s36, s26
    s_cselect_b32 s34, 320, s34
    s_cselect_b32 s35, 0, s35
    s_cselect_b32 s25, 54, s25
    v_and_b32 v4, 15, v2
    v_lshrrev_b32 v5, 4, v2
    v_cvt_f32_u32 v4, v4
    v_mul_u32_u24 v5, 20, v5
    v_add_u32 v5, s34, v5
    v_mov_b32 v7, {fx(sc)}
    v_mov_b32 v8, {fx(sc/2)}
    v_mov_b32 v9, {fx(-sc)}
    s_mul_i32 s27, s26, 76800
    s_lshl_b32 s25, s25, 10
    s_add_u32 s27, s27, s25''')
    for cc in range(4):
        a(f'''v_add_u32 v6, {5*cc}, v5
        v_cvt_f32_u32 v{16+cc}, v6
        v_cmp_eq_u32 vcc, 0, v6
        v_cmp_le_u32 s[28:29], v10, v6
        v_cmp_lt_u32 s[30:31], v10, v6
        s_or_b64 s[28:29], s[28:29], vcc
        s_nop 1
        v_cndmask_b32 v{20+cc}, v7, v8, s[28:29]
        v_cndmask_b32 v{24+cc}, v9, 0, s[28:29]
        v_cndmask_b32 v{20+cc}, v{20+cc}, 0, s[30:31]'''.replace('v_add_u32 v6', 'v_mov_b32 v10, 320\nv_add_u32 v6'))
    for nt in range(8):
        a(f'v_add_f32 v11, {fx(16.0*nt)}, v4')
        for cc in range(4): a(f'v_mul_f32 v{28+cc}, v11, v{16+cc}')
        for cc in range(4): a(f'v_mul_f32 v{28+cc}, {fx(1/640)}, v{28+cc}')
        for cc in range(4): a(f'v_fract_f32 v{28+cc}, v{28+cc}\nv_add_f32 v{28+cc}, s35, v{28+cc}')
        for cc in range(4): a(f'v_cos_f32 v{32+cc}, v{28+cc}\nv_sin_f32 v{36+cc}, v{28+cc}')
        for cc in range(4): a(f'v_mul_f32 v{32+cc}, v{32+cc}, v{20+cc}\nv_mul_f32 v{36+cc}, v{36+cc}, v{24+cc}')
        o = 40+4*nt
        for cc in range(4): a(f'v_cvt_pk_bf16_f32 v{o+cc}, v{32+cc}, v{36+cc}')
        a(f'buffer_store_dwordx4 {vr(o,4)}, v3, s[20:23], s27 offen {ST}\ns_add_u32 s27, s27, {5*76800}')
    a('K2_S_NOTG:')
    for p in range(5):
        a(f's_add_u32 m0, s14, {p*4096}\ns_add_u32 s15, s13, {p*4096}')
        for k in range(4): a(f'buffer_load_dwordx4 v3, s[16:19], s15 offen offset:{k*1024} lds')
    a('''    v_bfe_u32 v4, v2, 4, 1
    v_lshrrev_b32 v5, 5, v2
    v_bfe_u32 v6, v2, 2, 2
    v_and_b32 v7, 3, v2
    v_lshl_add_u32 v6, v5, 2, v6
    v_lshl_add_u32 v6, v4, 4, v6
    v_mul_u32_u24 v6, 1280, v6
    v_mul_u32_u24 v7, 8, v7
    s_mul_i32 s14, s3, 64
    v_add3_u32 v6, v6, v7, s14
    v_add_u32 v7, 40960, v6
    s_mul_i32 s15, s3, 768000
    s_lshl_b32 s13, s12, 11
    s_add_u32 s15, s15, s13
    s_waitcnt vmcnt(0)
    s_barrier''')
    a.stamp(2)
    for ks in range(2):
        for nb in range(10):
            o = 80+40*ks+4*nb
            off = (nb//5)*32+(nb % 5)*256
            for u in range(2): a(f'ds_read_b64_tr_b16 {vr(o+2*u,2)}, v{6+ks} offset:{off+u*10240}')
        a('s_waitcnt lgkmcnt(0)')
        for nb in range(10):
            o = 80+40*ks+4*nb
            a(f's_add_u32 s13, s15, {nb*76800+ks*1024}\nbuffer_store_dwordx4 {vr(o,4)}, v3, s[20:23], s13 offen {ST}')
    a.end()

def gen_k2(a, ST=''):
    header(a, 'k2_kernel')
    a(f'''s_cmp_ge_u32 s2, {a.opts.get('k2n', 252)}
    s_cbranch_scc1 K2_END
    s_load_dwordx4 s[4:7], s[0:1], 32
    s_load_dwordx2 s[8:9], s[0:1], 48
    s_load_dwordx2 s[10:11], s[0:1], 80
    v_lshrrev_b32 v1, 6, v0
    v_and_b32 v2, 63, v0
    v_readfirstlane_b32 s3, v1
    s_cmp_ge_u32 s2, 225
    s_cbranch_scc1 K2_SIDE
    s_cmp_ge_u32 s2, 144
    s_cbranch_scc1 K2_FFT''')
    gen_gemm1(a, ST)
    a('K2_FFT:'); gen_fft(a, ST)
    a('K2_SIDE:'); gen_side(a, ST)
    a('K2_END:\ns_endpgm')
    return descriptor('k2_kernel', 256+120, 256)
```

```python
from common import *
def gen_k3(a, NS=6):
    header(a, 'k3_kernel')
    a('''s_cmp_ge_u32 s2, 256
    s_cbranch_scc1 K3_END
    s_load_dwordx2 s[4:5], s[0:1], 0
    s_load_dwordx4 s[8:11], s[0:1], 56
    s_load_dwordx2 s[6:7], s[0:1], 80
    v_lshrrev_b32 v1, 6, v0
    v_and_b32 v2, 63, v0
    v_readfirstlane_b32 s3, v1
    s_and_b32 s12, s2, 7
    s_lshr_b32 s13, s2, 3
    s_lshr_b32 s14, s12, 1
    s_lshl_b32 s14, s14, 3
    s_lshr_b32 s15, s13, 2
    s_add_u32 s14, s14, s15
    s_and_b32 s12, s12, 1
    s_lshl_b32 s12, s12, 2
    s_and_b32 s13, s13, 3
    s_add_u32 s15, s12, s13
    v_lshlrev_b32 v3, 4, v2''')
    for k in range(4):
        a(f'''s_add_u32 s12, s3, {k}
        s_and_b32 s12, s12, 3
        s_lshl_b32 s13, s14, 2
        s_add_u32 s12, s12, s13
        s_mul_i32 s12, s12, 76800
        v_add_u32 v{4+k}, s12, v3''')
    a('s_mul_i32 s12, s15, 384000')
    for k in range(5):
        a(f'v_add_u32 v{8+k}, s12, v3')
        if k < 4: a('s_add_u32 s12, s12, 76800')
    a('s_add_u32 s32, s3, 59\ns_lshl_b32 s32, s32, 10\ns_waitcnt lgkmcnt(0)')
    a.srd(16, 6, AF_SZ, AF_OFF); a.srd(20, 6, BF_SZ, BF_OFF)
    nB = lambda i: 2 if i < 4 else 1 if i == 4 else 5
    def loads(i):
        sl = (i % NS)*36; out = []
        sb = 's32'; pre = ''
        post = {3: 's_sub_u32 s32, s32, 16384', 4: f's_sub_u32 s32, s32, {55*1024}'}.get(i, 's_add_u32 s32, s32, 4096')
        if i == 18:
            pre = f's_cmp_eq_u32 s3, 3\ns_cselect_b32 s33, {OOB}, s32\n'; sb = 's33'
        for k in range(nB(i)): out.append((pre if k == 0 else '')+f'buffer_load_dwordx4 {ar(sl+16+4*k,4)}, v{8+k}, s[20:23], {sb} offen')
        for k in range(4): out.append(f'buffer_load_dwordx4 {ar(sl+4*k,4)}, v{4+k}, s[16:19], s32 offen'+('\n'+post if k == 3 else ''))
        return out
    Q = []
    for i in range(NS-1):
        for x in loads(i): a(x); Q.append(i)
    CP = a.cpf('k3_kernel', 'K3_END', 1, vt=240)
    Q += [-1]*CP
    a.stamp(1)
    a.srd(24, 4, 2048*1280); a.srd(28, 8, 1280); a.srd(36, 10, 2048*1280)
    a('''s_lshl_b32 s12, s14, 2
    s_add_u32 s12, s12, s3
    s_lshl_b32 s12, s12, 4
    v_and_b32 v13, 15, v2
    v_add_u32 v13, s12, v13
    v_lshrrev_b32 v14, 5, v13
    v_and_b32 v13, 31, v13
    v_lshl_add_u32 v13, v13, 6, v14
    v_mul_u32_u24 v13, 1280, v13
    v_lshrrev_b32 v14, 4, v2
    v_lshlrev_b32 v14, 3, v14
    s_lshl_b32 s12, s15, 5
    v_add_u32 v14, s12, v14
    v_add_u32 v13, v13, v14''')
    AC = 16; XR = 96; BR = 108
    acc = lambda sa, blk: AC+20*sa+4*blk
    XL = [f'buffer_load_dwordx2 {vr(XR+2*k,2)}, v13, s[24:27], 0 offen offset:{k*256}' for k in range(5)]
    XL += [f'buffer_load_dwordx2 {vr(BR+2*k,2)}, v14, s[28:31], 0 offen offset:{k*256}' for k in range(5)]
    RA = 200; CS = 180
    a('s_add_u32 s12, s3, 1\nv_cvt_f32_u32 v15, s12')
    for j in range(5): a(f'v_mul_f32 v{CS+2*j}, {fx(j/5)}, v15')
    for j in range(5): a(f'v_sin_f32 v{CS+10+2*j}, -v{CS+2*j}\nv_cos_f32 v{CS+2*j}, v{CS+2*j}')
    a('s_nop 0')
    for j in range(10): a(f'v_mov_b32 v{CS+2*j+1}, v{CS+2*j}')
    XI = 20-NS
    for i in range(19):
        sl = (i % NS)*36
        a(f's_waitcnt vmcnt({len(Q)-1-max(k for k, q in enumerate(Q) if q == i)})')
        if i in (0, 6, 12): a.stamp(2+i//6)
        A = lambda sa: ar(sl+4*sa, 4)
        if i < 4:
            m = [f'v_mfma_f32_16x16x32_bf16 {vr(RA+16*p+4*sa,4)}, {ar(sl+16+4*p,4)}, {A(sa)}, {vr(RA+16*p+4*sa,4) if i else 0}' for p in range(2) for sa in range(4)]
        else:
            m = [f'v_mfma_f32_16x16x32_bf16 {vr(acc(sa,blk),4)}, {ar(sl+16+(4*blk if i > 4 else 0),4)}, {A(sa)}, {vr(acc(sa,blk),4)}' for blk in range(5) for sa in range(4)]
        f = loads(i+NS-1) if i+NS-1 <= 18 else (XL if i == XI else [])
        Q += [i+NS-1 if i+NS-1 <= 18 else -1]*len(f)
        k = 0
        for j, x in enumerate(m):
            a(x)
            e = min(len(f), j//2+1 if len(m) == 20 else j+2)
            while k < e: a(f[k]); k += 1
        assert k == len(f)
        if i == 3:
            a('s_nop 7\ns_nop 3')
            for blk in range(5):
                for sa in range(4):
                    for h in range(2): a(f'v_pk_mul_f32 {vr(acc(sa,blk)+2*h,2)}, {vr(RA+4*sa+2*h,2)}, {vr(CS+2*blk,2)}')
                for sa in range(4):
                    for h in range(2): a(f'v_pk_fma_f32 {vr(acc(sa,blk)+2*h,2)}, {vr(RA+16+4*sa+2*h,2)}, {vr(CS+10+2*blk,2)}, {vr(acc(sa,blk)+2*h,2)}')
            a('s_nop 1')
    a.stamp(5)
    for k in range(1, 4):
        a(f'''s_add_u32 s12, s3, {k}
        s_and_b32 s12, s12, 3
        s_mul_i32 s12, s12, 15360
        s_add_u32 s12, s12, {(k-1)*5120}
        v_add_u32 v{4+k}, s12, v3''')
    a('s_mul_i32 s12, s3, 15360\nv_add_u32 v4, s12, v3')
    for k in range(1, 4):
        for blk in range(5): a(f'ds_write_b128 v{4+k}, {vr(acc(k,blk),4)} offset:{blk*1024}')
    a('s_waitcnt vmcnt(0)')
    for j in range(10):
        a(f'''v_lshlrev_b32 v{120+2*j}, 16, v{XR+j}
        v_and_b32 v{121+2*j}, 0xffff0000, v{XR+j}
        v_lshlrev_b32 v{140+2*j}, 16, v{BR+j}
        v_and_b32 v{141+2*j}, 0xffff0000, v{BR+j}
        v_pk_add_f32 {vr(AC+2*j,2)}, {vr(AC+2*j,2)}, {vr(120+2*j,2)}
        v_pk_add_f32 {vr(AC+2*j,2)}, {vr(AC+2*j,2)}, {vr(140+2*j,2)}''')
    a('s_waitcnt lgkmcnt(0)\ns_barrier')
    a.stamp(6)
    for k in range(3):
        for blk in range(5): a(f'ds_read_b128 {vr(120+20*k+4*blk,4)}, v4 offset:{k*5120+blk*1024}')
    for k in range(3):
        a(f's_waitcnt lgkmcnt({10-5*k})')
        for j in range(10): a(f'v_pk_add_f32 {vr(AC+2*j,2)}, {vr(AC+2*j,2)}, {vr(120+20*k+2*j,2)}')
    for j in range(10): a(f'v_cvt_pk_bf16_f32 v{XR+j}, v{AC+2*j}, v{AC+2*j+1}')
    for k in range(5): a(f'buffer_store_dwordx2 {vr(XR+2*k,2)}, v13, s[36:39], 0 offen offset:{k*256} {a.opts.get("st3", "")}')
    a.end()
    a('K3_END:\ns_endpgm')
    return descriptor('k3_kernel', 256+36*NS, 256)
```

```python
from common import *
def gen_k1(a, ST=''):
    header(a, 'k1_kernel')
    PF = int(a.opts.get('pf', 0)); NPF = int(a.opts.get('npf', 32)); CH = -(-2160//(4*NPF))
    a(f'''s_cmp_ge_u32 s2, {352+NPF}
    s_cbranch_scc1 K1_END
    s_load_dwordx4 s[4:7], s[0:1], 0
    s_load_dwordx2 s[8:9], s[0:1], 16
    s_load_dwordx2 s[10:11], s[0:1], 80
    v_lshrrev_b32 v1, 6, v0
    v_and_b32 v2, 63, v0
    v_readfirstlane_b32 s3, v1''')
    a.cpf('k1_kernel', 'K1_END', 1, vt=232, dst=20)
    a('''s_cmp_ge_u32 s2, 256
    s_cbranch_scc1 K1_TR''')
    a('''s_and_b32 s12, s2, 7
    s_lshl_b32 s12, s12, 3
    s_lshr_b32 s13, s2, 3
    s_and_b32 s15, s13, 7
    s_add_u32 s12, s12, s15
    s_lshr_b32 s13, s13, 3
    v_lshrrev_b32 v3, 3, v0
    v_and_b32 v4, 7, v0
    v_lshlrev_b32 v5, 6, v3
    v_add_u32 v5, s12, v5
    v_mul_u32_u24 v5, 1280, v5
    v_lshl_add_u32 v5, v4, 4, v5
    s_waitcnt lgkmcnt(0)''')
    a.srd(16, 4, 2048*1280)
    a.srd(20, 10, X1T_SZ, X1T_OFF)
    a.srd(24, 10, YF_SZ, YF_OFF)
    XF = 16
    TF = 96
    TM = 176
    D = 208
    for t in range(10):
        a(f'buffer_load_dwordx4 {vr(XF+8*t+4,4)}, v5, s[16:19], 0 offen offset:{t*128}')
    a('''s_lshr_b32 s14, s13, 1
    s_and_b32 s31, s13, 1
    s_mul_i32 s31, s31, 5
    v_lshrrev_b32 v11, 5, v2''')
    rb = [TM, TM+8, TM+16]
    TX = lambda t: 240+4*t if t < 4 else 204
    for ex in range(2):
        so = 9 if ex == 0 else 1
        a(f'''s_add_u32 s15, s31, {'4' if ex else 's3'}
        s_lshl_b32 s15, s15, 5
        v_and_b32 v6, 31, v2
        v_add_u32 v6, s15, v6
        v_and_b32 v7, 1, v6
        v_and_b32 v8, 0xfffffffe, v6
        v_add_u32 v8, s14, v8
        v_lshl_add_u32 v{so}, v8, 1, v7
        v_cmp_eq_u32 vcc, 1, v{so}
        v_mov_b32 v10, 320
        s_lshl_b32 s15, s12, 6
        v_cndmask_b32 v8, v8, v10, vcc
        v_cndmask_b32 v7, v7, 0, vcc
        v_lshl_add_u32 v{so}, v8, 1, v7
        v_lshlrev_b32 v{so}, 12, v{so}
        v_lshl_add_u32 v{so}, v11, 5, v{so}
        v_add_u32 v{so}, s15, v{so}
        v_cvt_f32_u32 v8, v8
        v_cvt_f32_u32 v7, v7
        v_lshlrev_b32 v10, 3, v11''')
        if ex: a('s_mul_i32 s15, s3, 80\nv_add_u32 v10, s15, v10\ns_lshl_b32 s15, s3, 3\nv_add_u32 v1, s15, v1')
        a(f'''v_cvt_f32_u32 v10, v10
        v_mul_f32 v8, {fx(1/640)}, v8
        v_mul_f32 v7, {fx(0.25)}, v7
        v_fmac_f32 v7, v10, v8''')
        a(f'v_mul_f32 v{D}, {fx(16.0)}, v8')
        for t in range(2):
            for j in range(8): a(f'v_fmamk_f32 v{rb[t]+j}, v8, {fx(float(16*t+j))}, v7')
        a(f'v_cos_f32 v{D}, v{D}')
        for t in range(2):
            for j in range(8): a(f'v_cos_f32 v{rb[t]+j}, v{rb[t]+j}')
        a(f'v_add_f32 v{D}, v{D}, v{D}')
        for t in range(5 if ex else 20):
            if t >= 2:
                for j in range(8): a(f'v_fma_f32 v{rb[t%3]+j}, v{D}, v{rb[(t-1)%3]+j}, -v{rb[(t-2)%3]+j}')
            for j in range(4): a(f'v_cvt_pk_bf16_f32 v{(TX(t) if ex else TF+4*t)+j}, v{rb[t%3]+2*j}, v{rb[t%3]+2*j+1}')
    a.stamp(1)
    a('v_and_b32 v6, 31, v2')
    for e in range(4):
        a(f'''v_add_u32 v10, {2*e}, v11
        v_xor_b32 v10, v10, v6
        v_lshlrev_b32 v10, 4, v10
        v_lshl_add_u32 v10, v11, 9, v10
        v_add_u32 v{12+e}, {e*1024}, v10''')
    for t in range(10):
        a(f's_waitcnt vmcnt({9-t})')
        for k in range(4):
            src = XF+8*t+4+k
            a(f'v_lshlrev_b32 v{XF+8*t+2*k}, 16, v{src}\nv_and_b32 v{XF+8*t+2*k+1}, 0xffff0000, v{src}')
    a.stamp(2)
    P = lambda i: vr(XF+2*i, 2)
    for k in range(4): a(f'v_pk_add_f32 {vr(TM+2*k,2)}, {P(k)}, {P(k+4)}')
    for i in range(8, 40): a(f'v_pk_add_f32 {vr(TM+2*(i%4),2)}, {vr(TM+2*(i%4),2)}, {P(i)}')
    def red(dst):
        a(f'''v_pk_add_f32 {vr(TM,2)}, {vr(TM,2)}, {vr(TM+2,2)}
        v_pk_add_f32 {vr(TM+4,2)}, {vr(TM+4,2)}, {vr(TM+6,2)}
        s_nop 0
        v_pk_add_f32 {vr(TM,2)}, {vr(TM,2)}, {vr(TM+4,2)}
        s_nop 0
        v_add_f32 v{TM}, v{TM}, v{TM+1}
        s_nop 1
        v_add_f32_dpp v{TM+1}, v{TM}, v{TM} quad_perm:[1,0,3,2] row_mask:0xf bank_mask:0xf
        s_nop 1
        v_add_f32_dpp v{TM}, v{TM+1}, v{TM+1} quad_perm:[2,3,0,1] row_mask:0xf bank_mask:0xf
        s_nop 1
        v_add_f32_dpp v{TM+1}, v{TM}, v{TM} row_half_mirror row_mask:0xf bank_mask:0xf
        v_mul_f32 v{dst}, {fx(1/640)}, v{TM+1}''')
    M = TM+8
    red(M+2)
    a(f'v_sub_f32 v{M}, 0, v{M+2}\nv_sub_f32 v{M+1}, 0, v{M+2}')
    for i in range(40):
        d = vr(D+2*(i % 8), 2)
        a(f'v_pk_add_f32 {d}, {P(i)}, {vr(M,2)}')
        if i >= 4:
            k = i-4; dk = vr(D+2*(k % 8), 2); acc = vr(TM+2*(k % 4), 2)
            a(f'v_pk_mul_f32 {acc}, {dk}, {dk}' if k < 4 else f'v_pk_fma_f32 {acc}, {dk}, {dk}, {acc}')
    for k in range(36, 40):
        dk = vr(D+2*(k % 8), 2); acc = vr(TM+2*(k % 4), 2)
        a(f'v_pk_fma_f32 {acc}, {dk}, {dk}, {acc}')
    red(M+3)
    def rbf(dst, src):
        a(f'v_cvt_pk_bf16_f32 v{dst}, v{src}, v{src}\nv_and_b32 v{dst}, 0xffff0000, v{dst}')
    def rstd(dst, var):
        rbf(dst, var)
        a(f'v_add_f32 v{dst}, {fx(1e-5)}, v{dst}')
        rbf(dst, dst)
        a(f'v_sqrt_f32 v{dst}, v{dst}\ns_nop 0')
        rbf(dst, dst)
        a(f'v_rcp_f32 v{dst}, v{dst}\ns_nop 0')
    MB, R, OF, SG, M2, V2, R2, YA, YB = M+4, M+6, M+8, M+10, M+12, M+13, M+14, M+16, M+18
    rbf(MB, M+2); rstd(R, M+3)
    a(f'''v_mov_b32 v{R+1}, v{R}
    v_mul_f32 v{OF}, v{MB}, v{R}
    v_sub_f32 v{M2}, v{M+2}, v{MB}
    v_mul_f32 v{M2}, v{M2}, v{R}
    v_mul_f32 v{V2}, v{M+3}, v{R}
    v_mul_f32 v{V2}, v{V2}, v{R}
    v_mov_b32 v{YB}, v{OF}
    s_cmp_eq_u32 s14, 0
    s_cselect_b32 s28, -2.0, 0
    s_cselect_b32 s30, 1.0, -1.0
    s_mov_b32 s31, s30
    v_mul_f32 v{OF}, s28, v{OF}
    v_mov_b32 v{OF+1}, v{OF}
    v_lshlrev_b32 v10, 9, v4
    v_xor_b32 v6, v3, v4
    v_lshl_add_u32 v6, v6, 4, v10''')
    for t in range(5):
        b = D+16*(t % 2)
        for k in range(4): a(f'v_pk_fma_f32 {vr(b+2*k,2)}, {P(4*t+k+20)}, s[30:31], {P(4*t+k)}')
        for k in range(4): a(f'v_pk_fma_f32 {vr(b+2*k,2)}, {vr(b+2*k,2)}, {vr(R,2)}, {vr(OF,2)}')
        for k in range(4): a(f'v_cvt_pk_bf16_f32 v{b+8+k}, v{b+2*k}, v{b+2*k+1}')
        a(f'ds_write_b128 v6, {vr(b+8,4)} offset:{t*4096}')
    rbf(M2, M2); rstd(R2, V2)
    a(f'''v_add_f32 v{YB}, v{YB}, v{M2}
    v_mul_f32 v{YA}, v{R}, v{R2}
    v_mul_f32 v{YB}, v{YB}, v{R2}
    v_mov_b32 v{YA+1}, v{YA}
    v_sub_f32 v{YB}, 0, v{YB}
    v_lshl_add_u32 v10, v3, 4, v10
    v_mov_b32 v{YB+1}, v{YB}
    s_mul_i32 s15, s12, 40960''')
    for nt, ch in enumerate([(0, 1, 2), (3, 4, 5), (6, 7), (8, 9)]):
        if nt < 3: a(f's_cmp_lg_u32 s13, {nt}\ns_cbranch_scc1 K1_Y{nt+1}')
        for n, t in enumerate(ch):
            for k in range(4): a(f'v_pk_fma_f32 {vr(D+8*n+2*k,2)}, {P(4*t+k)}, {vr(YA,2)}, {vr(YB,2)}')
        a(f's_add_u32 s15, s15, {ch[0]*4096}')
        for n, t in enumerate(ch):
            for k in range(4): a(f'v_cvt_pk_bf16_f32 v{D+8*n+k}, v{D+8*n+2*k}, v{D+8*n+2*k+1}')
            a(f'buffer_store_dwordx4 {vr(D+8*n,4)}, v10, s[24:27], s15 offen {a.opts.get("sty", "")}')
            if n < len(ch)-1: a('s_add_u32 s15, s15, 4096')
        if nt < 3: a(f's_branch K1_YS\nK1_Y{nt+1}:')
    a('K1_YS:')
    a('v_and_b32 v6, 31, v2\ns_mul_i32 s28, s3, 5')
    for j in range(5):
        a(f'''s_and_b32 s29, s28, 3
        s_lshl_b32 s30, s29, 1
        v_add_u32 v7, s30, v11
        v_xor_b32 v7, v7, v6
        v_lshlrev_b32 v7, 4, v7
        v_lshl_add_u32 v7, v11, 9, v7
        s_lshl_b32 s30, s28, 10
        v_add_u32 v{TM+j}, s30, v7
        s_add_u32 s28, s28, 1''')
    a(f'''v_lshlrev_b32 v7, 4, v2
    s_lshl_b32 s28, s3, 10
    s_add_u32 s28, s28, 20480
    v_add_u32 v{TM+5}, s28, v7
    s_lshl_b32 s28, s3, 12
    s_add_u32 s28, s28, 20480
    v_add_u32 v{TM+6}, s28, v7''')
    a.stamp(3)
    a('s_waitcnt lgkmcnt(0)\ns_barrier')
    a.stamp(4)
    XE = TM+8; AC = D; AE = D+16
    for j in range(5): a(f'ds_read_b128 {vr(XE+4*j,4)}, v{TM+j}')
    for ks in range(20): a(f'ds_read_b128 {vr(XF+4*ks,4)}, v{12+ks%4} offset:{(ks//4)*4096}')
    a('s_waitcnt lgkmcnt(15)')
    for ks in range(20):
        if ks >= 5: a(f's_waitcnt lgkmcnt({19-ks+max(0, min(ks-9, 4))})')
        if ks < 5: a(f'v_mfma_f32_32x32x16_bf16 {vr(AE,16)}, {vr(XE+4*ks,4)}, {vr(TX(ks),4)}, {vr(AE,16) if ks else 0}')
        a(f'v_mfma_f32_32x32x16_bf16 {vr(AC,16)}, {vr(XF+4*ks,4)}, {vr(TF+4*ks,4)}, {vr(AC,16) if ks else 0}')
        if 9 <= ks < 13: a(f'ds_write_b128 v{TM+5}, {vr(AE+4*(ks-9),4)} offset:{(ks-9)*4096}')
    a('s_waitcnt lgkmcnt(0)\ns_barrier')
    for k in range(4): a(f'ds_read_b128 {vr(XE+4*k,4)}, v{TM+6} offset:{k*1024}')
    a('s_nop 7')
    a.stamp(5)
    for k in range(8): a(f'v_cvt_pk_bf16_f32 v{XF+k}, v{AC+2*k}, v{AC+2*k+1}')
    a(f'''buffer_store_dwordx4 {vr(XF,4)}, v9, s[20:23], 0 offen {ST}
    buffer_store_dwordx4 {vr(XF+4,4)}, v9, s[20:23], 0 offen offset:16 {ST}
    s_waitcnt lgkmcnt(0)''')
    for k in range(2): a(f'v_pk_add_f32 {vr(XE+2*k,2)}, {vr(XE+2*k,2)}, {vr(XE+4+2*k,2)}\nv_pk_add_f32 {vr(XE+8+2*k,2)}, {vr(XE+8+2*k,2)}, {vr(XE+12+2*k,2)}')
    for k in range(2): a(f'v_pk_add_f32 {vr(XE+2*k,2)}, {vr(XE+2*k,2)}, {vr(XE+8+2*k,2)}')
    a(f'''s_nop 0
    v_cvt_pk_bf16_f32 v{XE+4}, v{XE}, v{XE+1}
    v_cvt_pk_bf16_f32 v{XE+5}, v{XE+2}, v{XE+3}
    buffer_store_dwordx2 {vr(XE+4,2)}, v1, s[20:23], 0 offen {ST}''')
    a.end()
    a('K1_TR:')
    if PF: a('s_cmp_ge_u32 s2, 352\ns_cbranch_scc1 K1_PF')
    a('''s_sub_u32 s12, s2, 256
    s_and_b32 s13, s12, 15
    s_lshr_b32 s12, s12, 4
    s_mul_i32 s12, s12, 54
    v_add_u32 v3, s12, v2
    v_lshlrev_b32 v3, 1, v3
    s_lshl_b32 s14, s13, 4
    s_add_u32 s14, s14, s3
    s_mul_i32 s14, s14, 5136
    s_waitcnt lgkmcnt(0)''')
    a.srd(16, 6, 2048*642); a.srd(20, 8, 2048*642); a.srd(24, 10, WT_SZ, WT_OFF)
    for k in range(8):
        for i in range(4):
            a(f'''s_add_u32 s15, s14, {(32*i+k)*642}
            buffer_load_ushort v{16+4*k+i}, v3, s[16:19], s15 offen
            buffer_load_ushort v{48+4*k+i}, v3, s[20:23], s15 offen''')
    a.stamp(1)
    a('''v_mul_u32_u24 v4, 528, v2
    s_lshl_b32 s15, s3, 7
    v_add_u32 v4, s15, v4
    v_lshrrev_b32 v7, 5, v0
    v_and_b32 v8, 31, v0
    v_mul_u32_u24 v5, 528, v7
    v_lshl_add_u32 v5, v8, 4, v5
    v_add_u32 v7, s12, v7
    v_lshlrev_b32 v6, 13, v7
    v_lshl_add_u32 v6, v8, 4, v6
    s_lshl_b32 s15, s13, 9''')
    for k in range(8):
        a(f's_waitcnt vmcnt({56-8*k})')
        for i in range(4): a(f'v_lshl_or_b32 v{16+4*k+i}, v{48+4*k+i}, 16, v{16+4*k+i}')
        a(f'ds_write_b128 v4, {vr(16+4*k,4)} offset:{k*16}')
    a.stamp(2)
    a('s_waitcnt lgkmcnt(0)\ns_barrier')
    a.stamp(3)
    for r in range(7): a(f'ds_read_b128 {vr(80+4*r,4)}, v5 offset:{r*8*528}')
    for r in range(7):
        a(f's_waitcnt lgkmcnt({6-r})\nbuffer_store_dwordx4 {vr(80+4*r,4)}, v6, s[24:27], s15 offen {a.opts.get("stt", "")}')
        if r < 6: a('s_add_u32 s15, s15, 0x10000')
    a.end()
    if PF:
        a(f'''K1_PF:
        s_load_dwordx2 s[24:25], s[0:1], 32
        s_load_dwordx2 s[26:27], s[0:1], 48
        s_load_dwordx2 s[28:29], s[0:1], 40
        s_load_dwordx2 s[30:31], s[0:1], 56
        s_sub_u32 s12, s2, 352
        s_lshl_b32 s12, s12, 2
        s_add_u32 s12, s12, s3
        s_mul_i32 s12, s12, {CH*1024}
        v_lshlrev_b32 v3, 4, v2
        s_waitcnt lgkmcnt(0)''')
        a.stamp(1)
        if a.opts.get('cpf') == '1': a.cpf('k2_kernel', 'K3_END', 2, vt=8)
        if a.diag: a('s_waitcnt vmcnt(0)')
        a.stamp(2)
        a.srd(16, 24, 640*3456); a.srd(20, 26, 640*3456)
        a.srd(32, 28, 3456); a.srd(36, 30, 1280)
        a('v_lshlrev_b32 v4, 4, v0\nbuffer_load_dwordx4 v[240:243], v4, s[32:35], 0 offen\nbuffer_load_dwordx4 v[244:247], v4, s[36:39], 0 offen')
        for k in range(CH):
            a(f'buffer_load_dwordx4 {vr(16+4*k,4)}, v3, s[16:19], s12 offen')
            if PF > 1: a(f'buffer_load_dwordx4 {vr(96+4*k,4)}, v3, s[20:23], s12 offen')
            a('s_add_u32 s12, s12, 1024')
        a('s_waitcnt vmcnt(0)')
        a.end()
    a('K1_END:\ns_endpgm')
    return descriptor('k1_kernel', 256, 256)
```

```python
from common import *
import math
def gen_gemm1(a, ST):
    if a.opts.get('xm'):
        a('''s_and_b32 s12, s2, 1
        s_mul_i32 s12, s12, 18
        s_lshr_b32 s13, s2, 3
        s_add_u32 s13, s13, s12
        s_and_b32 s14, s13, 3
        s_lshr_b32 s13, s13, 2
        s_and_b32 s12, s2, 6
        s_lshl_b32 s12, s12, 1
        s_add_u32 s12, s12, s14''')
    else:
        a('''s_and_b32 s12, s2, 7
        s_lshr_b32 s13, s2, 3
        s_and_b32 s14, s13, 1
        s_lshl_b32 s12, s12, 1
        s_add_u32 s12, s12, s14
        s_lshr_b32 s13, s13, 1''')
    a(f'''    s_and_b32 s14, s3, 1
    s_lshr_b32 s15, s3, 1
    v_lshrrev_b32 v3, 3, v2
    v_and_b32 v4, 7, v2
    v_lshlrev_b32 v5, 1, v3
    v_and_b32 v5, 4, v5
    v_xor_b32 v4, v4, v5
    v_mul_u32_u24 v3, {int(a.opts.get('wpitch', 3456))}, v3
    v_lshl_add_u32 v3, v4, 4, v3
    v_lshlrev_b32 v4, 4, v2
    v_lshrrev_b32 v5, 5, v2
    v_lshlrev_b32 v6, 3, v5
    s_mul_i32 s32, s3, 55296
    s_mul_i32 s33, s13, 384
    s_add_u32 s32, s32, s33
    s_lshl_b32 s34, s12, 2
    s_add_u32 s34, s34, s3
    s_mul_i32 s34, s34, 40960
    s_mul_i32 s35, s14, 192
    s_add_u32 s35, s35, s33
    s_lshl_b32 s36, s3, 11
    s_lshl_b32 s37, s3, 12
    s_add_u32 s37, s37, 24576
    s_waitcnt lgkmcnt(0)''')
    a.srd(16, 4, 640*3456); a.srd(20, 10, YF_SZ, YF_OFF); a.srd(24, 6, 3456); a.srd(28, 10, AF_SZ, AF_OFF)
    BI = 160
    def dma(st):
        slot = (st % 4)*40960
        out = []
        for fp in range(3):
            for kk in range(2):
                out.append(f'''s_add_u32 m0, s36, {slot+fp*8192+kk*1024}
                s_add_u32 s38, s32, {st*64*3456+kk*8*3456+fp*128}
                buffer_load_dwordx4 v3, s[16:19], s38 offen lds''')
        out.append(f'''s_add_u32 m0, s37, {slot}
        s_add_u32 s38, s34, {st*4096}
        buffer_load_dwordx4 v4, s[20:23], s38 offen lds''')
        for ks in range(1, 4): out.append(f'buffer_load_dwordx4 v4, s[20:23], s38 offen offset:{ks*1024} lds')
        return out
    for x in dma(0): a(x)
    for fb in range(3):
        for g in range(4):
            a(f'buffer_load_dwordx2 {vr(BI+8*fb+2*g,2)}, v6, s[24:27], s35 offen offset:{fb*64+g*16}')
    for x in dma(1): a(x)
    CP = a.cpf('k2_kernel', 'K2_FFT', 1, vt=240)
    a.stamp(1)
    a('''v_bfe_u32 v7, v2, 2, 2
    v_and_b32 v8, 3, v2
    v_bfe_u32 v9, v2, 4, 1
    v_lshlrev_b32 v10, 10, v5
    v_lshl_add_u32 v10, v7, 7, v10
    v_lshl_add_u32 v10, v9, 5, v10
    v_lshl_add_u32 v10, v8, 3, v10
    v_lshrrev_b32 v7, 1, v7
    v_xor_b32 v7, s14, v7
    v_lshl_add_u32 v11, v7, 6, v10
    v_xor_b32 v12, 64, v11
    s_lshl_b32 s39, s14, 13
    s_lshl_b32 s40, s15, 13
    s_add_u32 s40, s40, 24576''')
    WA = 16
    for sl in range(4):
        a(f'''s_add_u32 s41, s39, {sl*40960}
        v_add_u32 v{WA+4*sl}, s41, v11
        s_add_u32 s41, s41, s39
        v_add_u32 v{WA+4*sl+1}, s41, v12
        s_add_u32 s41, s40, {sl*40960}
        v_add_u32 v{WA+4*sl+2}, s41, v4''')
    AC = 32
    FR = 128
    FB = [192, 212]
    acc = lambda fb, tb: AC+32*fb+16*tb
    a(f's_waitcnt vmcnt({10+CP})')
    for fb in range(3):
        for g in range(4):
            for p in range(2):
                src = BI+8*fb+2*g+p
                for tb in range(2):
                    d = acc(fb, tb)+4*g+2*p
                    a(f'v_lshlrev_b32 v{d}, 16, v{src}\nv_and_b32 v{d+1}, 0xffff0000, v{src}')
    def reads(st, ks, buf):
        sl = st % 4; b = FB[buf]; out = []
        for tb in range(2): out.append(f'ds_read_b128 {vr(b+12+4*tb,4)}, v{WA+4*sl+2} offset:{tb*4096+ks*1024}')
        for fb in range(3):
            reg = WA+4*sl+(1 if fb == 1 else 0); off = ks*2048+(8192 if fb == 2 else 0)
            for u in range(2): out.append(f'ds_read_b64_tr_b16 {vr(b+4*fb+2*u,2)}, v{reg} offset:{off+u*512}')
        return out
    def mf(buf):
        b = FB[buf]
        return [f'v_mfma_f32_32x32x16_bf16 {vr(acc(fb,tb),16)}, {vr(b+4*fb,4)}, {vr(b+12+4*tb,4)}, {vr(acc(fb,tb),16)}' for fb in range(3) for tb in range(2)]
    def weave(m, r, f):
        n = len(m); k = 0
        for i, x in enumerate(m):
            a(x)
            for y in r[3*i:3*i+3]: a(y)
            e = (len(f)*(i+1)+n-1)//n
            while k < e: a(f[k]); k += 1
    a(f's_waitcnt vmcnt({10+CP})\ns_barrier')
    a.stamp(2)
    for x in reads(0, 0, 0): a(x)
    buf = 0
    pend = dma(2)+dma(3)
    issued = {0: 10, 1: 10}
    order = [2]*10+[3]*10
    nq = 20
    def take(n):
        out = []
        for _ in range(n):
            if pend: out.append(pend.pop(0))
        return out
    total_issued = [20]
    def rd(ks, fb, d):
        reg = WA+4+(1 if fb == 1 else 0); off = ks*2048+(8192 if fb == 2 else 0)
        return [f'ds_read_b64_tr_b16 {vr(d+2*u,2)}, v{reg} offset:{off+u*512}' for u in range(2)]
    area = [lambda n: 232+4*n, lambda n: 176+4*n]
    for st in range(9):
        if st == 4: a.stamp(3)
        for ks in range(4):
            if ks < 3:
                a('s_waitcnt lgkmcnt(0)')
                f = take(int(a.opts.get('tk', 5)) if st == 0 else 3); total_issued[0] += len(f)
                weave(mf(buf), reads(st, ks+1, buf ^ 1), f)
            else:
                if st < 9:
                    a(f's_waitcnt lgkmcnt(0) vmcnt({total_issued[0]-10*(st+2)+(CP if st == 0 else 0)})\ns_barrier')
                    if st+4 <= 9: pend += dma(st+4)
                    m = mf(buf); r = reads(st+1, 0, buf ^ 1)
                    if st == 8:
                        r = [x for k in range(4) for x in rd(k, 0, area[0](k))+[f'ds_read_b128 {ar(8*k+4*tb,4)}, v{WA+6} offset:{tb*4096+k*1024}' for tb in range(2)]]
                    for x in r[:3]: a(x)
                    f = take(int(a.opts.get('tk', 5)) if st == 0 else 3); total_issued[0] += len(f)
                    weave(m, r[3:], f)
                else:
                    a('s_waitcnt lgkmcnt(0)')
                    weave(mf(buf), [], [])
            buf ^= 1
    assert not pend
    a.stamp(4)
    c0 = -2*math.log2(math.e)*math.sqrt(2/math.pi); c1 = c0*0.044715
    setup = f'''s_mov_b32 s42, {fx(c1)}
    s_mov_b32 s43, s42
    v_mov_b32 v8, {fx(c0)}
    v_mov_b32 v9, {fx(c0)}
    v_bfe_u32 v6, v2, 4, 1
    v_mul_u32_u24 v6, 76800, v6
    v_lshl_add_u32 v6, v5, 9, v6
    v_and_b32 v7, 15, v2
    v_lshl_add_u32 v6, v7, 4, v6
    s_lshl_b32 s38, s12, 1
    s_add_u32 s38, s38, s15
    s_mul_i32 s38, s38, 307200
    s_mul_i32 s39, s13, 6144
    s_mul_i32 s40, s14, 3072
    s_add_u32 s38, s38, s39
    s_add_u32 s38, s38, s40
    s_add_u32 s39, s38, 153600
'''.split('\n')
    T = 128
    def gelu(n):
        fb, tb = n//2, n % 2
        x = acc(fb, tb); t = T+16*(n % 2); o = 16+8*(n % 2) if fb == 2 else 248
        l = [f'v_pk_mul_f32 {vr(t+2*k,2)}, {vr(x+2*k,2)}, {vr(x+2*k,2)}' for k in range(8)]
        l += [f'v_pk_fma_f32 {vr(t+2*k,2)}, {vr(t+2*k,2)}, s[42:43], v[8:9]' for k in range(8)]
        l += [f'v_pk_mul_f32 {vr(t+2*k,2)}, {vr(t+2*k,2)}, {vr(x+2*k,2)}' for k in range(8)]
        l += [f'v_exp_f32 v{t+k}, v{t+k}' for k in range(16)]
        l += [f'v_pk_add_f32 {vr(t+2*k,2)}, {vr(t+2*k,2)}, 1.0 op_sel_hi:[1,0]' for k in range(8)]
        l += [f'v_rcp_f32 v{t+k}, v{t+k}' for k in range(16)]
        l += [f'v_pk_mul_f32 {vr(t+2*k,2)}, {vr(t+2*k,2)}, {vr(x+2*k,2)}' for k in range(8)]
        l += [f'v_cvt_pk_bf16_f32 v{o+k}, v{t+2*k}, v{t+2*k+1}' for k in range(8)]
        l += [f'buffer_store_dwordx4 {vr(o+4*tt,4)}, v6, s[28:31], s{38+tb} offen offset:{fb*1024+tt*256} {ST}' for tt in range(2)]
        return l
    for fb in range(3):
        a('s_waitcnt lgkmcnt(0)')
        m = [f'v_mfma_f32_32x32x16_bf16 {vr(acc(fb,tb),16)}, {vr(area[fb % 2](k),4)}, {ar(8*k+4*tb,4)}, {vr(acc(fb,tb),16)}' for k in range(4) for tb in range(2)]
        r = [x for k in range(4) for x in rd(k, fb+1, area[(fb+1) % 2](k))] if fb < 2 else []
        if fb == 0: weave(m, r, setup)
        else:
            weave(m[:3], [], [])
            g = gelu(2*fb-2)+gelu(2*fb-1)
            weave(m[3:], [], g[:40])
            for x in r+g[40:]: a(x)
    a('s_nop 7\ns_nop 7')
    for x in gelu(4)+gelu(5): a(x)
    a.stamp(5)
    a.end()

def gen_fft(a, ST):
    a.cpf('K2_FFT', 'K2_SIDE', 1, vt=250, dst=16)
    a(f'''s_sub_u32 s12, s2, 144
    s_lshr_b32 s34, s12, 2
    s_sub_u32 s35, s34, 4
    s_and_b32 s36, s35, 3
    s_add_u32 s36, s36, 1
    s_lshr_b32 s35, s35, 2
    s_cmp_lt_u32 s34, 4
    s_cselect_b32 s36, 0, s36
    s_cselect_b32 s35, s34, s35
    s_lshl_b32 s35, s35, 2
    s_and_b32 s34, s12, 3
    s_add_u32 s35, s35, s34
    s_lshl_b32 s35, s35, 2
    s_add_u32 s35, s35, s3
    s_mul_i32 s35, s35, 5
    s_add_u32 s13, s35, s36
    s_add_u32 s35, s3, 320
    s_cmp_eq_u32 s12, 80
    s_cselect_b32 s13, s35, s13
    s_lshl_b32 s14, s13, 13
    s_add_u32 s15, s14, 4096
    s_mov_b32 s33, s15
    s_cmp_eq_u32 s13, 0
    s_cselect_b32 s15, {OOB}, s15
    s_cmp_ge_u32 s13, 320
    s_cselect_b32 s15, {OOB}, s15
    v_and_b32 v3, 31, v2
    v_lshrrev_b32 v4, 5, v2
    v_lshlrev_b32 v5, 6, v3
    v_lshl_add_u32 v5, v4, 5, v5
    v_lshlrev_b32 v6, 4, v2
    s_waitcnt lgkmcnt(0)''')
    a.srd(16, 10, X1T_SZ, X1T_OFF); a.srd(20, 10, WT_SZ, WT_OFF); a.srd(28, 10, AF_SZ, AF_OFF)
    aXr = lambda b, t: ar(8*b+4*t, 4)
    aXi = lambda b, t: ar(16+8*b+4*t, 4)
    aC1, aS1, aN1, aC2, aS2 = 32, 40, 48, 56, 88
    c2 = lambda base, b, bp, t: ar(base+16*b+8*bp+4*t, 4)
    W = 16; ACC = 48; PK = 112; TW = 160
    for b in range(2):
        for t in range(2):
            a(f'buffer_load_dwordx4 {aXr(b,t)}, v5, s[16:19], s14 offen offset:{b*2048+t*16}')
            a(f'buffer_load_dwordx4 {aXi(b,t)}, v5, s[16:19], s15 offen offset:{b*2048+t*16}')
    a(f'''v_cvt_f32_u32 v7, v3
    v_lshlrev_b32 v8, 2, v4
    v_cvt_f32_u32 v8, v8
    v_and_b32 v15, 1, v2
    v_mul_u32_u24 v15, 0x8000, v15
    v_lshl_or_b32 v15, v15, 16, v15''')
    R = lambda e: 8*(e//4)+e % 4
    def angles(dst, scale, ladd=0.0, extra=None):
        a(f'v_add_f32 v9, {fx(ladd)}, v7\nv_mul_f32 v9, {fx(scale)}, v9\nv_mul_f32 v10, v9, v8')
        if extra: a(f'v_fmamk_f32 v10, v7, {fx(extra)}, v10')
        for e in range(16): a(f'v_fmamk_f32 v{dst+e}, v9, {fx(float(R(e)))}, v10')
    T0, T1, T2 = ACC, ACC+16, ACC+32
    P = PK
    angles(T0, 1/32)
    for e in range(16): a(f'v_cos_f32 v{T1+e}, v{T0+e}\nv_sin_f32 v{T2+e}, v{T0+e}')
    for k in range(8): a(f'v_cvt_pk_bf16_f32 v{P+k}, v{T1+2*k}, v{T1+2*k+1}\nv_cvt_pk_bf16_f32 v{P+8+k}, v{T2+2*k}, v{T2+2*k+1}\nv_cvt_pk_bf16_f32 v{P+16+k}, -v{T2+2*k}, -v{T2+2*k+1}')
    for k in range(24): a(f'v_accvgpr_write_b32 a{aC1+k}, v{P+k}')
    tw = lambda s, e: (TW+32*s+e, TW+32*s+16+e)
    for s_, (ladd, extra) in enumerate([(0.0, None), (0.0, 1/64), (32.0, None)]):
        angles(T0, 1/2048, ladd, extra)
        for e in range(16): a(f'v_cos_f32 v{tw(s_,e)[0]}, v{T0+e}\nv_sin_f32 v{tw(s_,e)[1]}, v{T0+e}')
    angles(T0, 1/64)
    for e in range(16): a(f'v_cos_f32 v{T1+e}, v{T0+e}\nv_sin_f32 v{T2+e}, v{T0+e}')
    for k in range(8): a(f'v_cvt_pk_bf16_f32 v{P+k}, v{T1+2*k}, v{T1+2*k+1}\nv_cvt_pk_bf16_f32 v{P+8+k}, v{T2+2*k}, v{T2+2*k+1}')
    for m, base in enumerate([aC2, aS2]):
        for k in range(8):
            s_ = P+8*m+k
            a(f'''v_xor_b32 v11, v15, v{s_}
            v_xor_b32 v12, 0x80000000, v{s_}
            v_accvgpr_write_b32 a{base+k}, v{s_}
            v_xor_b32 v13, 0x80000000, v11
            v_accvgpr_write_b32 a{base+8+k}, v11
            v_accvgpr_write_b32 a{base+16+k}, v12
            v_accvgpr_write_b32 a{base+24+k}, v13''')
    aR = lambda b: ACC+32*b
    aI = lambda b: ACC+32*b+16
    pk = lambda which, b, t=0: PK+16*which+8*b+4*t
    def mm(d, terms):
        for i, (x, y) in enumerate(terms):
            a(f'v_mfma_f32_32x32x16_bf16 {vr(d,16)}, {x}, {y}, {vr(d,16) if i else 0}')
    def cmul(b, getw, conj, neg):
        for e0 in range(0, 16, 4):
            ws = [getw(e0+j, j) for j in range(4)]
            for j in range(4):
                e = e0+j; c, s_ = ws[j]
                a(f'v_mul_f32 v{8+j}, v{aI(b)+e}, v{s_}\nv_mul_f32 v{12+j}, v{aR(b)+e}, v{s_}')
            for j in range(4):
                e = e0+j; c, s_ = ws[j]
                if conj:
                    a(f'v_fma_f32 v{aR(b)+e}, v{aR(b)+e}, v{c}, v{8+j}\nv_fma_f32 v{aI(b)+e}, v{aI(b)+e}, v{c}, -v{12+j}')
                else:
                    a(f'v_fma_f32 v{aR(b)+e}, v{aR(b)+e}, v{c}, -v{8+j}\nv_fma_f32 v{aI(b)+e}, v{aI(b)+e}, v{c}, v{12+j}')
        for k in range(8):
            r_, i_ = aR(b)+2*k, aI(b)+2*k
            a(f'v_cvt_pk_bf16_f32 v{pk(0,b)+k}, v{r_}, v{r_+1}\nv_cvt_pk_bf16_f32 v{pk(1,b)+k}, v{i_}, v{i_+1}')
            if neg is not None:
                q = r_ if neg == 'r' else i_
                a(f'v_cvt_pk_bf16_f32 v{pk(2,b)+k}, -v{q}, -v{q+1}')
    V4 = lambda r: vr(r, 4)
    for b in range(2):
        for g in range(4):
            a(f'buffer_load_dwordx4 {vr(W+16*b+4*g,4)}, v6, s[20:23], s{14 if b==0 else 33} offen offset:{g*1024}')
    a.stamp(1)
    a('s_waitcnt vmcnt(8)')
    a.stamp(2)
    for b in range(2):
        mm(aR(b), [(aXr(b,t), ar(aC1+4*t,4)) for t in range(2)]+[(aXi(b,t), ar(aS1+4*t,4)) for t in range(2)])
        mm(aI(b), [(aXi(b,t), ar(aC1+4*t,4)) for t in range(2)]+[(aXr(b,t), ar(aN1+4*t,4)) for t in range(2)])
    a('s_nop 7')
    for b in range(2):
        if b: a('s_nop 3')
        cmul(b, lambda e, j: tw(b, e), True, 'r')
    a('s_nop 1')
    ST4 = [(bp, t) for bp in range(2) for t in range(2)]
    for b in range(2):
        mm(aR(b), [(c2(aC2,b,bp,t), V4(pk(0,bp,t))) for bp, t in ST4]+[(c2(aS2,b,bp,t), V4(pk(1,bp,t))) for bp, t in ST4])
        mm(aI(b), [(c2(aC2,b,bp,t), V4(pk(1,bp,t))) for bp, t in ST4]+[(c2(aS2,b,bp,t), V4(pk(2,bp,t))) for bp, t in ST4])
    a.stamp(3)
    a('s_waitcnt vmcnt(0)\ns_nop 7\ns_nop 3')
    for b in range(2):
        def gw(e, j):
            w = W+16*b+e; c, s_ = TW+32+j, TW+36+j
            a(f'v_lshlrev_b32 v{c}, 16, v{w}\nv_and_b32 v{s_}, 0xffff0000, v{w}')
            return (c, s_)
        cmul(b, gw, False, 'i')
    a('s_nop 1')
    for b in range(2):
        mm(aR(b), [(V4(pk(0,bp,t)), c2(aC2,b,bp,t)) for bp, t in ST4]+[(V4(pk(2,bp,t)), c2(aS2,b,bp,t)) for bp, t in ST4])
        mm(aI(b), [(V4(pk(1,bp,t)), c2(aC2,b,bp,t)) for bp, t in ST4]+[(V4(pk(0,bp,t)), c2(aS2,b,bp,t)) for bp, t in ST4])
    a('s_nop 7\ns_nop 3')
    for b in range(2): cmul(b, lambda e, j: tw(2*b, e), False, None)
    a('s_nop 1')
    for b in range(2):
        mm(aR(b), [(ar(aC1+4*t,4), V4(pk(0,b,t))) for t in range(2)]+[(ar(aN1+4*t,4), V4(pk(1,b,t))) for t in range(2)])
        mm(aI(b), [(ar(aC1+4*t,4), V4(pk(1,b,t))) for t in range(2)]+[(ar(aS1+4*t,4), V4(pk(0,b,t))) for t in range(2)])
    a.stamp(4)
    a('''v_mul_u32_u24 v5, 4160, v4
    v_lshl_add_u32 v5, v3, 4, v5
    s_lshl_b32 s14, s3, 2
    v_add_u32 v5, s14, v5
    v_and_b32 v6, 31, v0
    v_mul_u32_u24 v6, 1040, v6
    v_lshrrev_b32 v7, 5, v0
    v_lshl_add_u32 v6, v7, 4, v6
    v_lshrrev_b32 v7, 4, v0
    v_mul_u32_u24 v7, 76800, v7
    v_and_b32 v8, 15, v0
    v_lshl_add_u32 v7, v8, 4, v7
    s_lshl_b32 s14, s12, 8
    s_add_u32 s14, s14, 56320
    s_cmp_eq_u32 s12, 80
    s_cselect_b32 s14, 55296, s14''')
    for b in range(2):
        if b: a('s_nop 7')
        for e in range(16):
            a(f'v_cvt_pk_bf16_f32 v{PK+16*b+e}, v{aR(b)+e}, v{aI(b)+e}')
        for e in range(16):
            a(f'ds_write_b32 v5, v{PK+16*b+e} offset:{(R(e)*65+32*b)*16}')
    a('s_waitcnt lgkmcnt(0)\ns_barrier')
    a.stamp(5)
    for r in range(8): a(f'ds_read_b128 {vr(16+4*r,4)}, v6 offset:{r*128}')
    a('s_mov_b32 s15, s14')
    for r in range(8):
        a(f's_waitcnt lgkmcnt({7-r})\nbuffer_store_dwordx4 {vr(16+4*r,4)}, v7, s[28:31], s15 offen {ST}\ns_add_u32 s15, s15, {16*76800}')
    a('s_cmp_lg_u32 s12, 80\ns_cbranch_scc1 K2_FEND')
    for k in range(4): a(f'v_mov_b32 v{60+k}, 0')
    for r in range(8):
        for q in range(1, 4): a(f'buffer_store_dwordx4 v[60:63], v7, s[28:31], s14 offen offset:{q*256} {ST}')
        a(f's_add_u32 s14, s14, {16*76800}')
    a('K2_FEND:')
    a.end()

def gen_side(a, ST):
    a.cpf('K2_SIDE', 'K2_END', 1, vt=250)
    a('''s_sub_u32 s12, s2, 225
    s_mul_i32 s13, s12, 81920
    s_mul_i32 s14, s3, 20480
    s_add_u32 s13, s13, s14
    v_lshlrev_b32 v3, 4, v2
    s_waitcnt lgkmcnt(0)''')
    a.srd(16, 8, 1728*1280); a.srd(20, 10, BF_SZ, BF_OFF)
    TN = int(a.opts.get('tn', 0))
    if TN:
        a.srd(40, 4, 640*3456); a.srd(48, 10, YF_SZ, YF_OFF)
        a(f'''s_sub_u32 s34, s2, 224
        s_lshr_b32 s34, s34, 3
        s_lshl_b32 s34, s34, 2
        s_add_u32 s34, s34, s3
        s_and_b32 s35, s2, 1
        s_mul_i32 s35, s35, 1536
        s_add_u32 s35, s35, {2*64*3456}
        s_and_b32 s36, s2, 6
        s_lshl_b32 s36, s36, 3
        s_add_u32 s36, s36, s34
        s_mul_i32 s36, s36, 40960
        v_mul_u32_u24 v13, 3456, v2
        v_lshlrev_b32 v14, 7, v2''')
        for k in range(TN):
            a(f'''s_mul_i32 s38, s34, 4370
            s_lshr_b32 s38, s38, 16
            s_mul_i32 s39, s38, 15
            s_sub_u32 s37, s34, s39
            s_lshl_b32 s37, s37, 7
            s_mul_i32 s38, s38, {64*3456}
            s_add_u32 s37, s37, s38
            s_add_u32 s37, s37, s35
            buffer_load_dword a{k}, v13, s[40:43], s37 offen
            s_add_u32 s34, s34, 16''')
            if k % 2 == 0: a(f's_add_u32 s36, s36, 8192\nbuffer_load_dword a{16+k}, v14, s[48:51], s36 offen')
    sc = 1.0/(320*2048)
    a(f'''s_lshl_b32 s24, s12, 2
    s_add_u32 s24, s24, s3
    s_cmp_ge_u32 s24, 41
    s_cbranch_scc1 K2_S_NOTG
    s_sub_u32 s25, s24, 4
    s_lshr_b32 s25, s25, 1
    s_and_b32 s26, s24, 1
    s_and_b32 s34, s25, 3
    s_add_u32 s34, s34, 1
    s_lshr_b32 s35, s25, 2
    s_add_u32 s25, s25, 59
    s_add_u32 s36, s24, 55
    s_cmp_lt_u32 s24, 4
    s_cselect_b32 s26, 0, s26
    s_cselect_b32 s34, 0, s34
    s_cselect_b32 s35, s24, s35
    s_cselect_b32 s25, s36, s25
    s_mul_i32 s35, s35, 80
    s_add_u32 s34, s34, s35
    s_cmp_eq_u32 s26, 1
    s_cselect_b32 s35, {fx(0.75)}, 0
    s_sub_u32 s36, s24, 36
    s_cmp_ge_u32 s24, 36
    s_cselect_b32 s26, s36, s26
    s_cselect_b32 s34, 320, s34
    s_cselect_b32 s35, 0, s35
    s_cselect_b32 s25, 54, s25
    v_and_b32 v4, 15, v2
    v_lshrrev_b32 v5, 4, v2
    v_cvt_f32_u32 v4, v4
    v_mul_u32_u24 v5, 20, v5
    v_add_u32 v5, s34, v5
    v_mov_b32 v7, {fx(sc)}
    v_mov_b32 v8, {fx(sc/2)}
    v_mov_b32 v9, {fx(-sc)}
    s_mul_i32 s27, s26, 76800
    s_lshl_b32 s25, s25, 10
    s_add_u32 s27, s27, s25''')
    for cc in range(4):
        a(f'''v_add_u32 v6, {5*cc}, v5
        v_cvt_f32_u32 v{16+cc}, v6
        v_cmp_eq_u32 vcc, 0, v6
        v_cmp_le_u32 s[28:29], v10, v6
        v_cmp_lt_u32 s[30:31], v10, v6
        s_or_b64 s[28:29], s[28:29], vcc
        s_nop 1
        v_cndmask_b32 v{20+cc}, v7, v8, s[28:29]
        v_cndmask_b32 v{24+cc}, v9, 0, s[28:29]
        v_cndmask_b32 v{20+cc}, v{20+cc}, 0, s[30:31]'''.replace('v_add_u32 v6', 'v_mov_b32 v10, 320\nv_add_u32 v6'))
    for nt in range(8):
        a(f'v_add_f32 v11, {fx(16.0*nt)}, v4')
        for cc in range(4): a(f'v_mul_f32 v{28+cc}, v11, v{16+cc}')
        for cc in range(4): a(f'v_mul_f32 v{28+cc}, {fx(1/640)}, v{28+cc}')
        for cc in range(4): a(f'v_fract_f32 v{28+cc}, v{28+cc}\nv_add_f32 v{28+cc}, s35, v{28+cc}')
        for cc in range(4): a(f'v_cos_f32 v{32+cc}, v{28+cc}\nv_sin_f32 v{36+cc}, v{28+cc}')
        for cc in range(4): a(f'v_mul_f32 v{32+cc}, v{32+cc}, v{20+cc}\nv_mul_f32 v{36+cc}, v{36+cc}, v{24+cc}')
        o = 40+4*nt
        for cc in range(4): a(f'v_cvt_pk_bf16_f32 v{o+cc}, v{32+cc}, v{36+cc}')
        a(f'buffer_store_dwordx4 {vr(o,4)}, v3, s[20:23], s27 offen {ST}\ns_add_u32 s27, s27, {5*76800}')
    a('K2_S_NOTG:')
    for p in range(5):
        a(f's_add_u32 m0, s14, {p*4096}\ns_add_u32 s15, s13, {p*4096}')
        for k in range(4): a(f'buffer_load_dwordx4 v3, s[16:19], s15 offen offset:{k*1024} lds')
    a('''    v_bfe_u32 v4, v2, 4, 1
    v_lshrrev_b32 v5, 5, v2
    v_bfe_u32 v6, v2, 2, 2
    v_and_b32 v7, 3, v2
    v_lshl_add_u32 v6, v5, 2, v6
    v_lshl_add_u32 v6, v4, 4, v6
    v_mul_u32_u24 v6, 1280, v6
    v_mul_u32_u24 v7, 8, v7
    s_mul_i32 s14, s3, 64
    v_add3_u32 v6, v6, v7, s14
    v_add_u32 v7, 40960, v6
    s_mul_i32 s15, s3, 768000
    s_lshl_b32 s13, s12, 11
    s_add_u32 s15, s15, s13
    s_waitcnt vmcnt(0)
    s_barrier''')
    a.stamp(2)
    for ks in range(2):
        for nb in range(10):
            o = 80+40*ks+4*nb
            off = (nb//5)*32+(nb % 5)*256
            for u in range(2): a(f'ds_read_b64_tr_b16 {vr(o+2*u,2)}, v{6+ks} offset:{off+u*10240}')
        a('s_waitcnt lgkmcnt(0)')
        for nb in range(10):
            o = 80+40*ks+4*nb
            a(f's_add_u32 s13, s15, {nb*76800+ks*1024}\nbuffer_store_dwordx4 {vr(o,4)}, v3, s[20:23], s13 offen {ST}')
    a.end()

def gen_k2(a, ST=''):
    header(a, 'k2_kernel')
    a(f'''s_cmp_ge_u32 s2, {a.opts.get('k2n', 252)}
    s_cbranch_scc1 K2_END
    s_load_dwordx4 s[4:7], s[0:1], 32
    s_load_dwordx2 s[8:9], s[0:1], 48
    s_load_dwordx2 s[10:11], s[0:1], 80
    v_lshrrev_b32 v1, 6, v0
    v_and_b32 v2, 63, v0
    v_readfirstlane_b32 s3, v1
    s_cmp_ge_u32 s2, 225
    s_cbranch_scc1 K2_SIDE
    s_cmp_ge_u32 s2, 144
    s_cbranch_scc1 K2_FFT''')
    gen_gemm1(a, ST)
    a('K2_FFT:'); gen_fft(a, ST)
    a('K2_SIDE:'); gen_side(a, ST)
    a('K2_END:\ns_endpgm')
    return descriptor('k2_kernel', 256+120, 256)
```

```python
from common import *
def gen_k1(a, ST=''):
    header(a, 'k1_kernel')
    PF = int(a.opts.get('pf', 0)); NPF = int(a.opts.get('npf', 32)); CH = 0 if a.opts.get('pfd') else -(-2160//(4*NPF))
    a(f'''s_cmp_ge_u32 s2, {352+NPF}
    s_cbranch_scc1 K1_END
    s_load_dwordx4 s[4:7], s[0:1], 0
    s_load_dwordx2 s[8:9], s[0:1], 16
    s_load_dwordx2 s[10:11], s[0:1], 80
    v_lshrrev_b32 v1, 6, v0
    v_and_b32 v2, 63, v0
    v_readfirstlane_b32 s3, v1''')
    a.cpf('k1_kernel', 'K1_END', 1, vt=232, dst=20)
    a('''s_cmp_ge_u32 s2, 256
    s_cbranch_scc1 K1_TR''')
    a('''s_and_b32 s12, s2, 7
    s_lshl_b32 s12, s12, 3
    s_lshr_b32 s13, s2, 3
    s_and_b32 s15, s13, 7
    s_add_u32 s12, s12, s15
    s_lshr_b32 s13, s13, 3
    v_lshrrev_b32 v3, 3, v0
    v_and_b32 v4, 7, v0
    v_lshlrev_b32 v5, 6, v3
    v_add_u32 v5, s12, v5
    v_mul_u32_u24 v5, 1280, v5
    v_lshl_add_u32 v5, v4, 4, v5
    s_load_dwordx2 s[32:33], s[0:1], 32
    s_waitcnt lgkmcnt(0)''')
    a.srd(16, 4, 2048*1280)
    a.srd(20, 10, X1T_SZ, X1T_OFF)
    a.srd(24, 10, YF_SZ, YF_OFF)
    XF = 16
    TF = 96
    TM = 176
    D = 208
    for t in range(10):
        a(f'buffer_load_dwordx4 {vr(XF+8*t+4,4)}, v5, s[16:19], 0 offen offset:{t*128}')
    a('''s_lshr_b32 s14, s13, 1
    s_and_b32 s31, s13, 1
    s_mul_i32 s31, s31, 5
    v_lshrrev_b32 v11, 5, v2''')
    rb = [TM, TM+8, TM+16]
    TX = lambda t: 240+4*t if t < 4 else 204
    for ex in range(2):
        so = 9 if ex == 0 else 1
        a(f'''s_add_u32 s15, s31, {'4' if ex else 's3'}
        s_lshl_b32 s15, s15, 5
        v_and_b32 v6, 31, v2
        v_add_u32 v6, s15, v6
        v_and_b32 v7, 1, v6
        v_and_b32 v8, 0xfffffffe, v6
        v_add_u32 v8, s14, v8
        v_lshl_add_u32 v{so}, v8, 1, v7
        v_cmp_eq_u32 vcc, 1, v{so}
        v_mov_b32 v10, 320
        s_lshl_b32 s15, s12, 6
        v_cndmask_b32 v8, v8, v10, vcc
        v_cndmask_b32 v7, v7, 0, vcc
        v_lshl_add_u32 v{so}, v8, 1, v7
        v_lshlrev_b32 v{so}, 12, v{so}
        v_lshl_add_u32 v{so}, v11, 5, v{so}
        v_add_u32 v{so}, s15, v{so}
        v_cvt_f32_u32 v8, v8
        v_cvt_f32_u32 v7, v7
        v_lshlrev_b32 v10, 3, v11''')
        if ex: a('s_mul_i32 s15, s3, 80\nv_add_u32 v10, s15, v10\ns_lshl_b32 s15, s3, 3\nv_add_u32 v1, s15, v1')
        a(f'''v_cvt_f32_u32 v10, v10
        v_mul_f32 v8, {fx(1/640)}, v8
        v_mul_f32 v7, {fx(0.25)}, v7
        v_fmac_f32 v7, v10, v8''')
        a(f'v_mul_f32 v{D}, {fx(16.0)}, v8')
        for t in range(2):
            for j in range(8): a(f'v_fmamk_f32 v{rb[t]+j}, v8, {fx(float(16*t+j))}, v7')
        a(f'v_cos_f32 v{D}, v{D}')
        for t in range(2):
            for j in range(8): a(f'v_cos_f32 v{rb[t]+j}, v{rb[t]+j}')
        a(f'v_add_f32 v{D}, v{D}, v{D}')
        for t in range(5 if ex else 20):
            if t >= 2:
                for j in range(8): a(f'v_fma_f32 v{rb[t%3]+j}, v{D}, v{rb[(t-1)%3]+j}, -v{rb[(t-2)%3]+j}')
            for j in range(4): a(f'v_cvt_pk_bf16_f32 v{(TX(t) if ex else TF+4*t)+j}, v{rb[t%3]+2*j}, v{rb[t%3]+2*j+1}')
    a.stamp(1)
    a('v_and_b32 v6, 31, v2')
    for e in range(4):
        a(f'''v_add_u32 v10, {2*e}, v11
        v_xor_b32 v10, v10, v6
        v_lshlrev_b32 v10, 4, v10
        v_lshl_add_u32 v10, v11, 9, v10
        v_add_u32 v{12+e}, {e*1024}, v10''')
    for t in range(10):
        a(f's_waitcnt vmcnt({9-t})')
        for k in range(4):
            src = XF+8*t+4+k
            a(f'v_lshlrev_b32 v{XF+8*t+2*k}, 16, v{src}\nv_and_b32 v{XF+8*t+2*k+1}, 0xffff0000, v{src}')
    a.stamp(2)
    if a.opts.get('pfd'):
        a.srd(36, 32, 640*3456)
        a('''s_lshl_b32 s34, s2, 2
        s_add_u32 s34, s34, s3
        s_mul_i32 s34, s34, 3072
        s_lshl_b32 s35, s3, 10
        v_lshlrev_b32 v7, 4, v2''')
        for k in range(3): a(f's_add_u32 m0, s35, {36864-k*1024}\nbuffer_load_dwordx4 v7, s[36:39], s34 offen offset:{k*1024} lds')
    P = lambda i: vr(XF+2*i, 2)
    for k in range(4): a(f'v_pk_add_f32 {vr(TM+2*k,2)}, {P(k)}, {P(k+4)}')
    for i in range(8, 40): a(f'v_pk_add_f32 {vr(TM+2*(i%4),2)}, {vr(TM+2*(i%4),2)}, {P(i)}')
    def red(dst):
        a(f'''v_pk_add_f32 {vr(TM,2)}, {vr(TM,2)}, {vr(TM+2,2)}
        v_pk_add_f32 {vr(TM+4,2)}, {vr(TM+4,2)}, {vr(TM+6,2)}
        s_nop 0
        v_pk_add_f32 {vr(TM,2)}, {vr(TM,2)}, {vr(TM+4,2)}
        s_nop 0
        v_add_f32 v{TM}, v{TM}, v{TM+1}
        s_nop 1
        v_add_f32_dpp v{TM+1}, v{TM}, v{TM} quad_perm:[1,0,3,2] row_mask:0xf bank_mask:0xf
        s_nop 1
        v_add_f32_dpp v{TM}, v{TM+1}, v{TM+1} quad_perm:[2,3,0,1] row_mask:0xf bank_mask:0xf
        s_nop 1
        v_add_f32_dpp v{TM+1}, v{TM}, v{TM} row_half_mirror row_mask:0xf bank_mask:0xf
        v_mul_f32 v{dst}, {fx(1/640)}, v{TM+1}''')
    M = TM+8
    red(M+2)
    a(f'v_sub_f32 v{M}, 0, v{M+2}\nv_sub_f32 v{M+1}, 0, v{M+2}')
    for i in range(40):
        d = vr(D+2*(i % 8), 2)
        a(f'v_pk_add_f32 {d}, {P(i)}, {vr(M,2)}')
        if i >= 4:
            k = i-4; dk = vr(D+2*(k % 8), 2); acc = vr(TM+2*(k % 4), 2)
            a(f'v_pk_mul_f32 {acc}, {dk}, {dk}' if k < 4 else f'v_pk_fma_f32 {acc}, {dk}, {dk}, {acc}')
    for k in range(36, 40):
        dk = vr(D+2*(k % 8), 2); acc = vr(TM+2*(k % 4), 2)
        a(f'v_pk_fma_f32 {acc}, {dk}, {dk}, {acc}')
    red(M+3)
    def rbf(dst, src):
        a(f'v_cvt_pk_bf16_f32 v{dst}, v{src}, v{src}\nv_and_b32 v{dst}, 0xffff0000, v{dst}')
    def rstd(dst, var):
        rbf(dst, var)
        a(f'v_add_f32 v{dst}, {fx(1e-5)}, v{dst}')
        rbf(dst, dst)
        a(f'v_sqrt_f32 v{dst}, v{dst}\ns_nop 0')
        rbf(dst, dst)
        a(f'v_rcp_f32 v{dst}, v{dst}\ns_nop 0')
    MB, R, OF, SG, M2, V2, R2, YA, YB = M+4, M+6, M+8, M+10, M+12, M+13, M+14, M+16, M+18
    rbf(MB, M+2); rstd(R, M+3)
    a(f'''v_mov_b32 v{R+1}, v{R}
    v_mul_f32 v{OF}, v{MB}, v{R}
    v_sub_f32 v{M2}, v{M+2}, v{MB}
    v_mul_f32 v{M2}, v{M2}, v{R}
    v_mul_f32 v{V2}, v{M+3}, v{R}
    v_mul_f32 v{V2}, v{V2}, v{R}
    v_mov_b32 v{YB}, v{OF}
    s_cmp_eq_u32 s14, 0
    s_cselect_b32 s28, -2.0, 0
    s_cselect_b32 s30, 1.0, -1.0
    s_mov_b32 s31, s30
    v_mul_f32 v{OF}, s28, v{OF}
    v_mov_b32 v{OF+1}, v{OF}
    v_lshlrev_b32 v10, 9, v4
    v_xor_b32 v6, v3, v4
    v_lshl_add_u32 v6, v6, 4, v10''')
    for t in range(5):
        b = D+16*(t % 2)
        for k in range(4): a(f'v_pk_fma_f32 {vr(b+2*k,2)}, {P(4*t+k+20)}, s[30:31], {P(4*t+k)}')
        for k in range(4): a(f'v_pk_fma_f32 {vr(b+2*k,2)}, {vr(b+2*k,2)}, {vr(R,2)}, {vr(OF,2)}')
        for k in range(4): a(f'v_cvt_pk_bf16_f32 v{b+8+k}, v{b+2*k}, v{b+2*k+1}')
        a(f'ds_write_b128 v6, {vr(b+8,4)} offset:{t*4096}')
    rbf(M2, M2); rstd(R2, V2)
    a(f'''v_add_f32 v{YB}, v{YB}, v{M2}
    v_mul_f32 v{YA}, v{R}, v{R2}
    v_mul_f32 v{YB}, v{YB}, v{R2}
    v_mov_b32 v{YA+1}, v{YA}
    v_sub_f32 v{YB}, 0, v{YB}
    v_lshl_add_u32 v10, v3, 4, v10
    v_mov_b32 v{YB+1}, v{YB}
    s_mul_i32 s15, s12, 40960''')
    for nt, ch in enumerate([(0, 1, 2), (3, 4, 5), (6, 7), (8, 9)]):
        if nt < 3: a(f's_cmp_lg_u32 s13, {nt}\ns_cbranch_scc1 K1_Y{nt+1}')
        for n, t in enumerate(ch):
            for k in range(4): a(f'v_pk_fma_f32 {vr(D+8*n+2*k,2)}, {P(4*t+k)}, {vr(YA,2)}, {vr(YB,2)}')
        a(f's_add_u32 s15, s15, {ch[0]*4096}')
        for n, t in enumerate(ch):
            for k in range(4): a(f'v_cvt_pk_bf16_f32 v{D+8*n+k}, v{D+8*n+2*k}, v{D+8*n+2*k+1}')
            a(f'buffer_store_dwordx4 {vr(D+8*n,4)}, v10, s[24:27], s15 offen {a.opts.get("sty", "")}')
            if n < len(ch)-1: a('s_add_u32 s15, s15, 4096')
        if nt < 3: a(f's_branch K1_YS\nK1_Y{nt+1}:')
    a('K1_YS:')
    a('v_and_b32 v6, 31, v2\ns_mul_i32 s28, s3, 5')
    for j in range(5):
        a(f'''s_and_b32 s29, s28, 3
        s_lshl_b32 s30, s29, 1
        v_add_u32 v7, s30, v11
        v_xor_b32 v7, v7, v6
        v_lshlrev_b32 v7, 4, v7
        v_lshl_add_u32 v7, v11, 9, v7
        s_lshl_b32 s30, s28, 10
        v_add_u32 v{TM+j}, s30, v7
        s_add_u32 s28, s28, 1''')
    a(f'''v_lshlrev_b32 v7, 4, v2
    s_lshl_b32 s28, s3, 10
    s_add_u32 s28, s28, 20480
    v_add_u32 v{TM+5}, s28, v7
    s_lshl_b32 s28, s3, 12
    s_add_u32 s28, s28, 20480
    v_add_u32 v{TM+6}, s28, v7''')
    a.stamp(3)
    a('s_waitcnt lgkmcnt(0)\ns_barrier')
    a.stamp(4)
    XE = TM+8; AC = D; AE = D+16
    for j in range(5): a(f'ds_read_b128 {vr(XE+4*j,4)}, v{TM+j}')
    for ks in range(20): a(f'ds_read_b128 {vr(XF+4*ks,4)}, v{12+ks%4} offset:{(ks//4)*4096}')
    a('s_waitcnt lgkmcnt(15)')
    for ks in range(20):
        if ks >= 5: a(f's_waitcnt lgkmcnt({19-ks+max(0, min(ks-9, 4))})')
        if ks < 5: a(f'v_mfma_f32_32x32x16_bf16 {vr(AE,16)}, {vr(XE+4*ks,4)}, {vr(TX(ks),4)}, {vr(AE,16) if ks else 0}')
        a(f'v_mfma_f32_32x32x16_bf16 {vr(AC,16)}, {vr(XF+4*ks,4)}, {vr(TF+4*ks,4)}, {vr(AC,16) if ks else 0}')
        if 9 <= ks < 13: a(f'ds_write_b128 v{TM+5}, {vr(AE+4*(ks-9),4)} offset:{(ks-9)*4096}')
    a('s_waitcnt lgkmcnt(0)\ns_barrier')
    for k in range(4): a(f'ds_read_b128 {vr(XE+4*k,4)}, v{TM+6} offset:{k*1024}')
    a('s_nop 7')
    if a.opts.get('pfd'): a('s_waitcnt vmcnt(0)')
    a.stamp(5)
    for k in range(8): a(f'v_cvt_pk_bf16_f32 v{XF+k}, v{AC+2*k}, v{AC+2*k+1}')
    a(f'''buffer_store_dwordx4 {vr(XF,4)}, v9, s[20:23], 0 offen {ST}
    buffer_store_dwordx4 {vr(XF+4,4)}, v9, s[20:23], 0 offen offset:16 {ST}
    s_waitcnt lgkmcnt(0)''')
    for k in range(2): a(f'v_pk_add_f32 {vr(XE+2*k,2)}, {vr(XE+2*k,2)}, {vr(XE+4+2*k,2)}\nv_pk_add_f32 {vr(XE+8+2*k,2)}, {vr(XE+8+2*k,2)}, {vr(XE+12+2*k,2)}')
    for k in range(2): a(f'v_pk_add_f32 {vr(XE+2*k,2)}, {vr(XE+2*k,2)}, {vr(XE+8+2*k,2)}')
    a(f'''s_nop 0
    v_cvt_pk_bf16_f32 v{XE+4}, v{XE}, v{XE+1}
    v_cvt_pk_bf16_f32 v{XE+5}, v{XE+2}, v{XE+3}
    buffer_store_dwordx2 {vr(XE+4,2)}, v1, s[20:23], 0 offen {ST}''')
    a.end()
    a('K1_TR:')
    if PF: a('s_cmp_ge_u32 s2, 352\ns_cbranch_scc1 K1_PF')
    a('''s_sub_u32 s12, s2, 256
    s_and_b32 s13, s12, 15
    s_lshr_b32 s12, s12, 4
    s_mul_i32 s12, s12, 54
    v_add_u32 v3, s12, v2
    v_lshlrev_b32 v3, 1, v3
    s_lshl_b32 s14, s13, 4
    s_add_u32 s14, s14, s3
    s_mul_i32 s14, s14, 5136
    s_waitcnt lgkmcnt(0)''')
    a.srd(16, 6, 2048*642); a.srd(20, 8, 2048*642); a.srd(24, 10, WT_SZ, WT_OFF)
    for k in range(8):
        for i in range(4):
            a(f'''s_add_u32 s15, s14, {(32*i+k)*642}
            buffer_load_ushort v{16+4*k+i}, v3, s[16:19], s15 offen
            buffer_load_ushort v{48+4*k+i}, v3, s[20:23], s15 offen''')
    a.stamp(1)
    a('''v_mul_u32_u24 v4, 528, v2
    s_lshl_b32 s15, s3, 7
    v_add_u32 v4, s15, v4
    v_lshrrev_b32 v7, 5, v0
    v_and_b32 v8, 31, v0
    v_mul_u32_u24 v5, 528, v7
    v_lshl_add_u32 v5, v8, 4, v5
    v_add_u32 v7, s12, v7
    v_lshlrev_b32 v6, 13, v7
    v_lshl_add_u32 v6, v8, 4, v6
    s_lshl_b32 s15, s13, 9''')
    for k in range(8):
        a(f's_waitcnt vmcnt({56-8*k})')
        for i in range(4): a(f'v_lshl_or_b32 v{16+4*k+i}, v{48+4*k+i}, 16, v{16+4*k+i}')
        a(f'ds_write_b128 v4, {vr(16+4*k,4)} offset:{k*16}')
    a.stamp(2)
    a('s_waitcnt lgkmcnt(0)\ns_barrier')
    a.stamp(3)
    for r in range(7): a(f'ds_read_b128 {vr(80+4*r,4)}, v5 offset:{r*8*528}')
    for r in range(7):
        a(f's_waitcnt lgkmcnt({6-r})\nbuffer_store_dwordx4 {vr(80+4*r,4)}, v6, s[24:27], s15 offen {a.opts.get("stt", "")}')
        if r < 6: a('s_add_u32 s15, s15, 0x10000')
    a.end()
    if PF:
        a(f'''K1_PF:
        s_load_dwordx2 s[24:25], s[0:1], 32
        s_load_dwordx2 s[26:27], s[0:1], 48
        s_load_dwordx2 s[28:29], s[0:1], 40
        s_load_dwordx2 s[30:31], s[0:1], 56
        s_sub_u32 s12, s2, 352
        s_lshl_b32 s12, s12, 2
        s_add_u32 s12, s12, s3
        s_mul_i32 s12, s12, {CH*1024}
        v_lshlrev_b32 v3, 4, v2
        s_waitcnt lgkmcnt(0)''')
        if PF == 3:
            a.srd(40, 6, 2048*642); a.srd(48, 8, 2048*642)
            a('''s_sub_u32 s13, s2, 352
            s_and_b32 s14, s13, 15
            s_mul_i32 s14, s14, 82176
            s_lshr_b32 s13, s13, 4
            s_lshl_b32 s13, s13, 2
            s_add_u32 s13, s13, s3
            s_mul_i32 s13, s13, 3424
            s_add_u32 s14, s14, s13''')
            for k in range(4):
                a(f'buffer_load_dwordx4 {vr(200+8*k,4)}, v3, s[40:43], s14 offen offset:{k*1024 if k < 3 else 2400}\nbuffer_load_dwordx4 {vr(204+8*k,4)}, v3, s[48:51], s14 offen offset:{k*1024 if k < 3 else 2400}')
        a.stamp(1)
        if a.opts.get('cpf') == '1': a.cpf('k2_kernel', 'K3_END', 2, vt=8)
        if a.diag: a('s_waitcnt vmcnt(0)')
        a.stamp(2)
        a.srd(16, 24, 640*3456); a.srd(20, 26, 640*3456)
        a.srd(32, 28, 3456); a.srd(36, 30, 1280)
        a('v_lshlrev_b32 v4, 4, v0\nbuffer_load_dwordx4 v[240:243], v4, s[32:35], 0 offen\nbuffer_load_dwordx4 v[244:247], v4, s[36:39], 0 offen')
        for k in range(CH):
            a(f'buffer_load_dwordx4 {vr(16+4*k,4)}, v3, s[16:19], s12 offen')
            if PF == 2: a(f'buffer_load_dwordx4 {vr(96+4*k,4)}, v3, s[20:23], s12 offen')
            a('s_add_u32 s12, s12, 1024')
        a('s_waitcnt vmcnt(0)')
        a.end()
    a('K1_END:\ns_endpgm')
    return descriptor('k1_kernel', 256, 256)
```
